```python
import torch

def _softmax(x, axis=-1):
    return torch.softmax(x, dim=axis)
def _gelu(x):
    return torch.nn.functional.gelu(x, approximate="tanh")
def _silu(x):
    return torch.nn.functional.silu(x)
def _sigmoid(x):
    return torch.sigmoid(x)
def _layernorm(x, axis=-1, eps=1e-5):
    m = x.mean(dim=axis, keepdim=True)
    v = x.var(dim=axis, keepdim=True, unbiased=False)
    return (x - m) / torch.sqrt(v + eps)
def _scatter_add(tgt, idx, src, axis=0):
    return tgt.clone().index_add_(axis, idx, src)
def _segment_sum(src, seg, n):
    out = torch.zeros((n,) + src.shape[1:], dtype=src.dtype)
    return out.index_add_(0, seg, src)
def _pad(x, pw):
    flat = tuple(v for pair in reversed(pw) for v in pair)
    return torch.nn.functional.pad(x, flat)

kernel_name = 'parallel_sum__ssm_conv_s5__dense_activation_squared_relu__prompt'

def setup_inputs():

    _w = (lambda a: (lambda t: t.to(torch.bfloat16) if t.is_floating_point() else t)(torch.as_tensor(a)))
    def _A_setup():
        B, S, D = 1, 2048, 512
        P = D
        Lambda_re = -0.5 * (lambda _x: torch.exp(torch.as_tensor(_x)))((lambda *s: torch.randn(*s, dtype=torch.bfloat16) * 0.8)(P))
        Lambda_im = (lambda *s: torch.randn(*s, dtype=torch.bfloat16) * 0.8)(P) * 1.0
        B_re = (lambda *s: torch.randn(*s, dtype=torch.bfloat16) * 0.8)(P, D) * (D ** -0.5)
        B_im = (lambda *s: torch.randn(*s, dtype=torch.bfloat16) * 0.8)(P, D) * (D ** -0.5)
        C_re = (lambda *s: torch.randn(*s, dtype=torch.bfloat16) * 0.8)(D, P) * (P ** -0.5)
        C_im = (lambda *s: torch.randn(*s, dtype=torch.bfloat16) * 0.8)(D, P) * (P ** -0.5)
        log_dt = (lambda *s: torch.randn(*s, dtype=torch.bfloat16) * 0.8)(P) * 0.3 - 2.0
        Dskip = (lambda *s: torch.randn(*s, dtype=torch.bfloat16) * 0.4)(D)
        return {
            "x": _w((lambda *s: torch.randn(*s, dtype=torch.bfloat16) * 0.05)(B, S, D)),
            "Lambda_re": _w(Lambda_re),
            "Lambda_im": _w(Lambda_im),
            "B_re": _w(B_re),
            "B_im": _w(B_im),
            "C_re": _w(C_re),
            "C_im": _w(C_im),
            "log_dt": _w(log_dt),
            "Dskip": _w(Dskip),
        }
    _A_in = _A_setup()

    def _B_setup():
        B, S, D, F = 1, 2048, 512, 1376
        return {
            "x": _w((lambda *s: torch.randn(*s, dtype=torch.bfloat16) * 0.05)(B, S, D)),
            "w1": _w((lambda *s: torch.randn(*s, dtype=torch.bfloat16) * 0.05)(D, F)),
            "b1": _w((lambda *s: torch.randn(*s, dtype=torch.bfloat16) * 0.2)(F)),
            "w2": _w((lambda *s: torch.randn(*s, dtype=torch.bfloat16) * 0.05)(F, D)),
            "b2": _w((lambda *s: torch.randn(*s, dtype=torch.bfloat16) * 0.8)(D)),
        }
    _B_in = _B_setup()

    return {
        "A_x": _A_in["x"],
        "A_Lambda_re": _A_in["Lambda_re"],
        "A_Lambda_im": _A_in["Lambda_im"],
        "A_B_re": _A_in["B_re"],
        "A_B_im": _A_in["B_im"],
        "A_C_re": _A_in["C_re"],
        "A_C_im": _A_in["C_im"],
        "A_log_dt": _A_in["log_dt"],
        "A_Dskip": _A_in["Dskip"],
        "B_x": _B_in["x"],
        "B_w1": _B_in["w1"],
        "B_b1": _B_in["b1"],
        "B_w2": _B_in["w2"],
        "B_b2": _B_in["b2"],
    }

def reference(A_x, A_Lambda_re, A_Lambda_im, A_B_re, A_B_im, A_C_re, A_C_im, A_log_dt, A_Dskip, B_x, B_w1, B_b1, B_w2, B_b2):
    def _A_ref(x, Lambda_re, Lambda_im, B_re, B_im, C_re, C_im, log_dt, Dskip):
        Bsz, L, H = x.shape
        Lam = Lambda_re + 1j * Lambda_im
        Bmat = B_re + 1j * B_im
        Cmat = C_re + 1j * C_im
        dt = torch.exp(log_dt)
        Lam_bar = torch.exp(dt * Lam)
        B_bar = ((Lam_bar - 1.0) / Lam)[:, None] * Bmat
        Bu = torch.einsum("bld,pd->blp", x + 0j, B_bar)
        h = torch.zeros_like(Bu[:, 0, :])
        hs = []
        for t in range(L):
            h = Lam_bar[None, :] * h + Bu[:, t, :]
            hs.append(h)
        hseq = torch.stack(hs, 1)
        y = 2.0 * torch.einsum("blp,dp->bld", hseq, Cmat).real + x * Dskip[None, None, :]
        return y

    def _B_ref(x, w1, b1, w2, b2):
        h = torch.einsum("bsd,df->bsf", x, w1) + b1
        zero = torch.zeros_like(h)
        r = torch.where(h > zero, h, zero)
        h = r * r
        out = torch.einsum("bsf,fd->bsd", h, w2) + b2
        return out

    x = A_x
    xn = _layernorm(x, axis=-1)
    return x + _A_ref(xn, A_Lambda_re, A_Lambda_im, A_B_re, A_B_im, A_C_re, A_C_im, A_log_dt, A_Dskip) + _B_ref(xn, B_w1, B_b1, B_w2, B_b2)
```

```python
NAME = "parallel_sum__ssm_conv_s5__dense_activation_squared_relu__prompt"
class Asm:
    def __init__(self):
        self.lines = []
        self.nlab = 0
    def __call__(self, s, *a):
        for ln in s.strip("\n").split("\n"):
            self.lines.append("    " + ln.strip())
    def label(self, name):
        self.lines.append(name + ":")
    def newlabel(self, p="L"):
        self.nlab += 1
        return f"{p}_{self.nlab}"
    def raw(self, s):
        self.lines.append(s)
    def text(self):
        return "\n".join(self.lines) + "\n"

HEADER = """; Kernarg layout (136 bytes, ptrs only, base s[0:1]):
"""
def kernel_open(name):
    return f""".text
.globl {name}
.p2align 8
.type {name},@function
{name}:
"""
def kernel_desc(name, vgpr=512, sgpr=102, accum=256):
    return f""".section .rodata,"a"
.p2align 6
.amdhsa_kernel {name}
  .amdhsa_next_free_vgpr {vgpr}
  .amdhsa_next_free_sgpr {sgpr}
  .amdhsa_accum_offset {accum}
  .amdhsa_group_segment_fixed_size 0
  .amdhsa_kernarg_size 136
  .amdhsa_user_sgpr_count 2
  .amdhsa_user_sgpr_kernarg_segment_ptr 1
  .amdhsa_system_sgpr_workgroup_id_x 1
  .amdhsa_float_denorm_mode_32 3
.end_amdhsa_kernel
"""
```

```python
import re

class Item:
    __slots__ = ("text", "kind", "tok", "vm", "ds", "label", "cost")
    def __init__(self, text=None, kind="op", vm=None, ds=None, label=None):
        self.text = text; self.kind = kind; self.vm = vm; self.ds = ds; self.label = label
        self.cost = 1

def _cls(m):
    if m.startswith("v_mfma"): return "mfma"
    if m.startswith(("buffer_", "global_", "flat_")): return "vmem"
    if m.startswith("ds_"): return "ds"
    if m.startswith(("s_load", "s_memtime", "s_memrealtime", "s_buffer_load")): return "smem"
    if m.startswith("v_"): return "valu"
    if m.startswith("s_"): return "salu"
    raise ValueError(m)

class S(list):
    def op(self, text):
        last = None
        for ln in text.strip().split("\n"):
            ln = ln.split(";")[0].strip()
            if not ln: continue
            it = Item(ln, _cls(ln.split()[0]))
            self.append(it); last = it
        return last
    __call__ = op
    def wait(self, vm=None, ds=None):
        self.append(Item(None, "wait", vm=vm, ds=ds))
    def label(self, name):
        self.append(Item(None, "label", label=name))
    def barrier(self):
        self.op("s_barrier")
    def comment(self, t):
        self.append(Item(t, "comment"))

def merge(main, fill, lead=0, tail=0):
    out = S()
    n = len(main); m = len(fill)
    span = max(n - lead - tail, 1)
    k = 0
    def put(x):
        if isinstance(x, list): out.extend(x)
        else: out.append(x)
    for i, it in enumerate(main):
        put(it)
        if i >= lead - 1:
            done = min(i - lead + 2, span) if lead else min(i + 1, span)
            while k < m and (k + 1) * span <= done * m:
                put(fill[k]); k += 1
    while k < m:
        put(fill[k]); k += 1
    return out

_REG = re.compile(r"^(-|neg\()?(abs\()?([vas])(\d+|\[(\d+):(\d+)\])\)?$")
def regs_of(tok):
    tok = tok.strip()
    if tok in ("vcc",): return {("s", 106), ("s", 107)}
    if tok == "vcc_lo": return {("s", 106)}
    if tok == "vcc_hi": return {("s", 107)}
    if tok == "exec": return {("s", 126), ("s", 127)}
    if tok == "exec_lo": return {("s", 126)}
    if tok == "exec_hi": return {("s", 127)}
    if tok == "m0": return {("s", 124)}
    m = _REG.match(tok)
    if not m: return set()
    k = m.group(3)
    if m.group(5) is not None: return {(k, i) for i in range(int(m.group(5)), int(m.group(6)) + 1)}
    return {(k, int(m.group(4)))}

TRANS = ("v_exp_f32", "v_log_f32", "v_rcp_f32", "v_rsq_f32", "v_sqrt_f32", "v_sin_f32", "v_cos_f32")
def parse(text):
    parts = text.split(None, 1)
    mn = parts[0]; rest = parts[1] if len(parts) > 1 else ""
    cls = _cls(mn)
    ops = []
    depth = 0; cur = ""
    for ch in rest:
        if ch == "[": depth += 1
        if ch == "]": depth -= 1
        if ch == "," and depth == 0: ops.append(cur.strip()); cur = ""
        else: cur += ch
    if cur.strip(): ops.append(cur.strip())
    mods = ""
    if ops:
        sp = ops[-1].split(None, 1)
        ops[-1] = sp[0]
        if len(sp) > 1: mods = sp[1]
    rs = [regs_of(o) for o in ops]
    W = set(); R = set(); ex = {}
    base = mn.replace("_e32", "").replace("_e64", "").replace("_dpp", "").replace("_sdwa", "")
    if cls == "mfma":
        W = rs[0]; R = rs[1] | rs[2] | rs[3]
        ex = dict(A=rs[1] | rs[2], C=rs[3], D=rs[0], passes=8 if "32x32x16" in mn else 4)
    elif cls == "valu":
        if base.startswith("v_cmp"):
            W = rs[0]; R = set().union(*rs[1:])
        elif base in ("v_permlane32_swap_b32", "v_permlane16_swap_b32"):
            W = rs[0] | rs[1]; R = rs[0] | rs[1]; ex["perm"] = True
        elif base in ("v_add_co_u32", "v_sub_co_u32"):
            W = rs[0] | rs[1]; R = set().union(*rs[2:])
        elif base in ("v_addc_co_u32",):
            W = rs[0] | rs[1]; R = set().union(*rs[2:])
        else:
            W = rs[0]; R = set().union(*rs[1:]) if len(rs) > 1 else set()
            if base.startswith(("v_fmac", "v_dot2c")): R |= rs[0]
            if base == "v_cndmask_b32" and len(ops) == 3: R |= regs_of("vcc")
        if "row_" in mods or "quad_perm" in mods or mn.endswith("_dpp"):
            ex["dpp"] = True; R |= rs[0]
        if base in ("v_readfirstlane_b32", "v_readlane_b32"): ex["rdlane"] = True
        if base in TRANS: ex["trans"] = True
    elif cls == "vmem":
        lds = " lds" in (" " + mods) or "load_lds" in mn
        if "store" in mn or "atomic" in mn:
            R = set().union(*rs)
            if mn.startswith("buffer_"): data = rs[0]
            else: data = rs[1]
            ex["stdata"] = data; ex["wide"] = ("x4" in mn or "x3" in mn)
        elif lds:
            R = set().union(*rs) | regs_of("m0"); ex["ldsdma"] = True
        elif mn in ("buffer_wbl2", "buffer_inv"):
            pass
        else:
            W = rs[0]; R = set().union(*rs[1:])
    elif cls == "ds":
        if "read" in mn or "bpermute" in mn or "swizzle" in mn:
            W = rs[0]; R = set().union(*rs[1:])
        else:
            R = set().union(*rs)
    elif cls == "smem":
        W = rs[0]; R = set().union(*rs[1:]) if len(rs) > 1 else set()
    else:
        if base.startswith(("s_cmp", "s_cbranch", "s_branch", "s_waitcnt", "s_barrier", "s_nop", "s_sleep", "s_endpgm", "s_setprio", "s_bitcmp")):
            R = set().union(*rs) if rs else set()
        else:
            W = rs[0]; R = set().union(*rs[1:]) if len(rs) > 1 else set()
            if "saveexec" in base: W |= regs_of("exec")
    return dict(mn=mn, base=base, cls=cls, W=W, R=R, ex=ex, text=text)

def vonly(s): return {r for r in s if r[0] in "va"}
def sonly(s): return {r for r in s if r[0] == "s"}

def need(p, c):
    n = 0
    pc, cc = p["cls"], c["cls"]
    if pc == "valu":
        wv = vonly(p["W"]); ws = sonly(p["W"])
        if cc == "mfma" and wv & c["R"]: n = max(n, 2)
        if cc == "valu":
            if c["ex"].get("dpp") and wv & c["R"]: n = max(n, 2)
            if c["ex"].get("perm") and wv & c["R"]: n = max(n, 2)
            if c["ex"].get("rdlane") and wv & c["R"]: n = max(n, 1)
            if p["ex"].get("trans") and not c["ex"].get("trans") and wv & c["R"]: n = max(n, 1)
            if ws & c["R"]: n = max(n, 4 if c["ex"].get("rdlane") else 2)
        if cc == "vmem" and ws & c["R"]: n = max(n, 5)
    if pc == "salu":
        if cc == "vmem" and c["ex"].get("ldsdma") and regs_of("m0") & p["W"]: n = max(n, 1)
    if pc == "vmem" and p["ex"].get("wide"):
        if cc == "valu" and p["ex"]["stdata"] & c["W"]: n = max(n, 2)
        elif p["ex"]["stdata"] & c["W"]: n = max(n, 1)
    if pc == "mfma":
        P = p["ex"]["passes"]; D = p["ex"]["D"]
        if cc == "mfma":
            if D & c["ex"]["A"]: n = max(n, P + 4)
            if D & c["ex"]["C"] and not (D == c["ex"]["C"] and P == c["ex"]["passes"]): n = max(n, P + 2)
            if D & c["ex"]["D"] and not (D == c["ex"]["C"]): n = max(n, P + 2)
        elif cc in ("valu", "vmem", "ds"):
            if D & (c["R"] | c["W"]): n = max(n, P + 4)
            if cc == "valu" and p["ex"]["C"] & c["W"]: n = max(n, P - 1)
    return n

def finalize(items, report=None):
    vm_idx = {}; ds_idx = {}
    nvm = 0; nds = 0
    seq = []
    smem_pending = False
    for it in items:
        if it.kind == "vmem":
            vm_idx[id(it)] = nvm; nvm += 1; seq.append(it.text)
        elif it.kind == "ds":
            ds_idx[id(it)] = nds; nds += 1; seq.append(it.text)
        elif it.kind == "wait":
            parts = []
            if it.vm is not None:
                if it.vm == 0: n = 0
                else:
                    toks = it.vm if isinstance(it.vm, list) else [it.vm]
                    n = nvm - 1 - max(vm_idx[id(t)] for t in toks)
                if n <= 63: parts.append(f"vmcnt({n})")
            if it.ds is not None:
                if it.ds == 0: n = 0
                else:
                    toks = it.ds if isinstance(it.ds, list) else [it.ds]
                    n = nds - 1 - max(ds_idx[id(t)] for t in toks)
                parts.append(f"lgkmcnt({min(n, 15)})")
            if parts: seq.append("s_waitcnt " + " ".join(parts))
        elif it.kind == "label": seq.append(it.label + ":")
        elif it.kind == "comment": seq.append("; " + it.text)
        else: seq.append(it.text)
    out = []; hist = []
    added = 0
    for ln in seq:
        if ln.endswith(":") or ln.startswith(";"):
            out.append(ln); continue
        c = parse(ln)
        req = 0
        dist = 0
        for p, st in reversed(hist):
            r = need(p, c) - dist
            if r > req: req = r
            dist += st
            if dist >= 24: break
        if req > 0:
            added += req
            if report is not None: report.append((req, ln))
            k = req
            while k > 0:
                t = min(k, 16)
                out.append(f"s_nop {t-1}"); hist.append((parse(f"s_nop {t-1}"), t)); k -= t
        st = 1
        if c["mn"] == "s_nop": st = int(ln.split()[1]) + 1
        out.append(ln); hist.append((c, st))
        if len(hist) > 40: hist = hist[-30:]
    return out, added

class Alloc:
    def __init__(self, n, start=0):
        self.n = n; self.used = {}; self.start = start; self.peak = 0
    def alloc(self, name, cnt=1, align=1, at=None):
        if align > 2: align = 2
        rng = [at] if at is not None else (range(self.n - cnt, self.start - 1, -1) if cnt >= 8 else range(self.start, self.n - cnt + 1))
        for b in rng:
            if b % align: continue
            if all((b + i) not in self.used for i in range(cnt)):
                for i in range(cnt): self.used[b + i] = name
                self.peak = max(self.peak, b + cnt)
                return b
        raise RuntimeError(f"out of registers for {name} x{cnt}; used={len(self.used)}")
    def free(self, *names):
        for nm in names:
            ks = [k for k, v in self.used.items() if v == nm]
            assert ks, nm
            for k in ks: del self.used[k]
```

```python
import sys
from strm import *
from asmlib import NAME, kernel_open, kernel_desc

WS_STAT = 0x1000
WS_CAR  = 0x8000
WS_FLs  = 0x30000
WS_FLm  = 0x31000
WS_Hm   = 0x100000
WS_Hs   = 0x800000
WS_TS   = 0x1000000
WS_REC  = 0x1000000
OOB     = 0x40000000
KB = 1024
def XSLOT(k): return 16 * KB * (k & 3)
def BSLOT(k): return 64 * KB + 8 * KB * (k & 3)
def W1SLOT(k): return (96 * KB + 12 * KB * k) if k < 5 else 12 * KB * (k - 5)
RING = {c: (48 + 16 * i) * KB for i, c in enumerate("ABCDEF")}
C_SL = "ABCABCAB"
W2_SL = "DCABEFDCBEF"
S0 = 156 * KB
S0_RSTD = S0; S0_PK = S0 + 512; S0_BCS = S0 + 1024; S0_WT = S0 + 2048
S1 = 36 * KB
S1_T = S1; S1_CP = S1 + 8 * KB
S2_WCS = 144 * KB
LOG2E = 0x3fb8aa3b

def gen(stamps=False, P=None):
    P = dict(dict(gath=3, touch=True), **(P or {}))
    V = Alloc(256, 1)
    pro = S()
    nst = [0]
    STREG = [20, 22, 24, 26, 28, 30, 32, 34, 96, 98, 100]
    def stamp(s):
        if stamps and nst[0] < len(STREG):
            r = STREG[nst[0]]; nst[0] += 1
            s(f"s_memrealtime s[{r}:{r+1}]")
    def v(name, cnt=1, align=1): return V.alloc(name, cnt, align)
    def vr(b, n): return f"v[{b}:{b+n-1}]"
    def ar(b, n): return f"a[{b}:{b+n-1}]"
    slow = S()

    s = pro
    s("s_cmp_ge_u32 s2, 256\ns_cbranch_scc1 L_end")
    s("s_load_dwordx16 s[4:19], s[0:1], 0\ns_load_dwordx16 s[20:35], s[0:1], 64\ns_load_dwordx2 s[36:37], s[0:1], 128")
    if stamps: s("s_memrealtime s[94:95]")
    t0 = v("t0"); t1 = v("t1"); t2 = v("t2"); t3 = v("t3")
    s(f"v_lshrrev_b32 v{t0}, 6, v0\nv_and_b32 v0, 63, v0")
    s(f"v_readfirstlane_b32 s3, v{t0}")
    s("""s_and_b32 s38, s2, 7
    s_lshl_b32 s38, s38, 1
    s_bfe_u32 s39, s2, 0x10003
    s_add_u32 s38, s38, s39
    s_lshr_b32 s39, s2, 4
    s_and_b32 s74, s39, 7
    s_lshr_b32 s75, s39, 3
    s_lshl_b32 s76, s38, 1
    s_add_u32 s75, s75, s76
    s_lshr_b32 s81, s3, 1
    s_add_u32 s76, s76, s81
    s_mul_i32 s77, s39, 3
    s_lshl_b32 s81, s39, 1
    s_add_u32 s81, s81, 11
    s_min_u32 s77, s77, s81
    s_lshl_b32 s78, s3, 12
    s_lshl_b32 s79, s3, 11
    s_mul_i32 s80, s3, 3072""")
    rho = v("rho"); hh = v("hh"); lam = v("lam"); l4 = v("l4"); p8 = v("p8")
    s(f"""v_and_b32 v{rho}, 31, v0
    v_lshrrev_b32 v{hh}, 5, v0
    v_lshrrev_b32 v{lam}, 3, v0
    v_lshrrev_b32 v{l4}, 4, v0
    v_and_b32 v{p8}, 7, v0""")
    vsr = v("vsr")
    s(f"""s_lshl_b32 s81, s38, 7
    s_lshl_b32 s82, s39, 3
    s_add_u32 s81, s81, s82
    s_lshl_b32 s82, s3, 1
    s_add_u32 s81, s81, s82
    v_add_u32 v{t0}, s81, v{hh}
    v_lshlrev_b32 v{t1}, 4, v{rho}
    v_lshl_add_u32 v{vsr}, v{t0}, 10, v{t1}""")
    vsst = v("vsst")
    s(f"v_lshlrev_b32 v{vsst}, 3, v{t0}\nv_add_u32 v{vsst}, {WS_STAT}, v{vsst}")
    kE = v("kE"); kO = v("kO")
    s(f"""v_xor_b32 v{kE}, v{p8}, v{l4}
    v_lshlrev_b32 v{kE}, 4, v{kE}
    v_xor_b32 v{kO}, 64, v{kE}""")
    vxd = v("vxd", 4)
    s(f"""s_lshl_b32 s81, s38, 7
    s_lshl_b32 s82, s3, 5
    s_add_u32 s81, s81, s82
    v_and_b32 v{t0}, 3, v{lam}
    v_lshl_add_u32 v{t0}, v{hh}, 4, v{t0}
    v_add_u32 v{t0}, s81, v{t0}
    v_lshlrev_b32 v{t0}, 10, v{t0}
    v_add_u32 v{vxd}, v{t0}, v{kE}
    v_add_u32 v{t1}, v{t0}, v{kO}
    v_add_u32 v{vxd+1}, {3072}, v{t1}
    v_add_u32 v{vxd+2}, {2*3072}, v{vxd}
    v_add_u32 v{vxd+3}, {3*3072}, v{t1}""")
    vbd = v("vbd", 2)
    s(f"""s_lshl_b32 s81, s39, 5
    s_and_b32 s82, s3, 1
    s_lshl_b32 s82, s82, 4
    s_add_u32 s81, s81, s82
    v_add_u32 v{t0}, s81, v{lam}
    v_lshlrev_b32 v{t0}, 10, v{t0}
    v_add_u32 v{vbd}, v{t0}, v{kE}
    v_add_u32 v{t1}, v{t0}, v{kO}
    v_add_u32 v{vbd+1}, {7168}, v{t1}""")
    vp2 = v("vp2"); vf2 = v("vf2"); vn2 = v("vn2")
    s(f"""s_lshl_b32 s81, s39, 6
    v_lshl_add_u32 v{vp2}, v{rho}, 1, s81
    s_lshl_b32 s81, s77, 6
    v_lshl_add_u32 v{vf2}, v{rho}, 1, s81
    s_lshl_b32 s81, s74, 7
    v_and_b32 v{t0}, 15, v0
    v_lshl_add_u32 v{vn2}, v{t0}, 3, s81""")
    s.wait(ds=0)
    def srd(b, p, n):
        s(f"s_mov_b32 s{b}, s{p}\ns_mov_b32 s{b+1}, s{p+1}\ns_mov_b32 s{b+2}, {n}\ns_mov_b32 s{b+3}, 0x20000")
    srd(40, 4, 0x200000)
    s("s_load_dword s72, s[36:37], 0")
    vst = v("vst", 8, 4)
    s(f"buffer_load_dwordx4 {vr(vst,4)}, v{vsr}, s[40:43], 0 offen")
    tk_st = s(f"buffer_load_dwordx4 {vr(vst+4,4)}, v{vsr}, s[40:43], 0 offen offset:512")
    vlr = v("vlr"); vli = v("vli"); vld = v("vld")
    s(f"global_load_ushort v{vlr}, v{vp2}, s[6:7]")
    s(f"global_load_ushort v{vli}, v{vp2}, s[8:9]")
    tk_lam = s(f"global_load_ushort v{vld}, v{vp2}, s[18:19]")
    if P["touch"]:
        ta = v("ta", 2, 2); tb = v("tb")
        s(f"""s_lshl_b32 s81, s2, 2
        s_add_u32 s81, s81, s3
        s_lshl_b32 s82, s81, 9
        s_mul_i32 s81, s81, 1376
        v_and_b32 v{t0}, 3, v0
        v_lshl_add_u32 v{t0}, v{t0}, 7, s82
        v_and_b32 v{t1}, 15, v0
        v_min_u32 v{t1}, 10, v{t1}
        v_lshl_add_u32 v{t1}, v{t1}, 7, s81
        v_cmp_gt_u32 vcc, 16, v0
        v_cndmask_b32 v{t0}, v{t1}, v{t0}, vcc
        s_getpc_b64 s[90:91]""")
        s.label("L_pc")
        s(f"""s_lshr_b32 s81, s2, 3
        s_lshl_b32 s81, s81, 2
        s_add_u32 s81, s81, s3
        s_lshl_b32 s81, s81, 8
        v_and_b32 v{t1}, 1, v0
        v_lshl_add_u32 v{t1}, v{t1}, 7, s81
        v_min_u32 v{t1}, CODE_LIM, v{t1}
        v_cmp_gt_u32 vcc, 48, v0
        v_cndmask_b32 v{t0}, v{t1}, v{t0}, vcc
        v_mov_b32 v{ta}, s90
        v_mov_b32 v{ta+1}, s91""")
        for lim, p in ((48, 28), (32, 24), (16, 16), (12, 14), (8, 12), (4, 10)):
            s(f"""v_cmp_gt_u32 vcc, {lim}, v0
            v_mov_b32 v{t1}, s{p}
            v_mov_b32 v{t2}, s{p+1}
            v_cndmask_b32 v{ta}, v{ta}, v{t1}, vcc
            v_cndmask_b32 v{ta+1}, v{ta+1}, v{t2}, vcc""")
        s(f"""v_add_co_u32 v{ta}, vcc, v{ta}, v{t0}
        v_addc_co_u32 v{ta+1}, vcc, 0, v{ta+1}, vcc
        global_load_dword v{tb}, {vr(ta,2)}, off""")
    s("s_cmp_lt_u32 s3, 2\ns_cselect_b32 s44, s10, s12\ns_cselect_b32 s45, s11, s13\ns_mov_b32 s46, 0x80000\ns_mov_b32 s47, 0x20000")

    def dma_xb(kc):
        g = []
        a = S(); a(f"s_add_u32 m0, s78, {XSLOT(kc)}\ns_movk_i32 s81, {128*kc}")
        a(f"buffer_load_dwordx4 v{vxd}, s[40:43], s81 offen lds"); g.append(a)
        for q in (1, 2, 3):
            a = S(); a(f"buffer_load_dwordx4 v{vxd+q}, s[40:43], s81 offen offset:{1024*q} lds"); g.append(a)
        a = S(); a(f"s_add_u32 m0, s79, {BSLOT(kc)}\ns_nop 0")
        a(f"buffer_load_dwordx4 v{vbd}, s[44:47], s81 offen lds"); g.append(a)
        a = S(); a(f"buffer_load_dwordx4 v{vbd+1}, s[44:47], s81 offen offset:1024 lds"); g.append(a)
        return g
    def flat(g):
        o = S()
        for a in g: o.extend(a) if isinstance(a, list) else o.append(a)
        return o
    XB = [dma_xb(k) for k in range(8)]
    s.extend(flat(XB[0]))
    vb1 = v("vb1", 3); vdk = v("vdk", 2, 2); vb2 = v("vb2", 2, 2)
    srd(84, 26, 2752)
    for t in range(3):
        s(f"buffer_load_ushort v{vb1+t}, v{vf2}, s[84:87], 0 offen offset:{64*t}")
    s(f"global_load_dwordx2 {vr(vdk,2)}, v{vn2}, s[20:21]")
    tk_small = s(f"global_load_dwordx2 {vr(vb2,2)}, v{vn2}, s[30:31]")
    srd(48, 24, 512 * 2752); srd(52, 14, 0x80000); srd(56, 16, 0x80000); srd(60, 28, 1376 * 1024)
    srd(64, 36, WS_REC); srd(68, 32, 0x400000)
    V.free("vp2", "vf2", "vn2", "vsr")
    if P["touch"]: V.free("ta")
    stamp(s)

    vxr = v("vxr", 4); vbr = v("vbr", 4); vwr = v("vwr", 4)
    s(f"""v_lshrrev_b32 v{t2}, 1, v{rho}
    v_and_b32 v{t2}, 7, v{t2}
    v_lshlrev_b32 v{t3}, 7, v{rho}""")
    for st in range(4):
        s(f"""s_add_u32 s81, s3, {st}
        s_and_b32 s81, s81, 3
        s_lshl_b32 s82, s81, 1
        v_add_u32 v{t0}, s82, v{hh}
        v_xor_b32 v{t0}, v{t0}, v{t2}
        v_lshl_add_u32 v{t0}, v{t0}, 4, v{t3}
        v_add_u32 v{vxr+st}, s78, v{t0}
        v_add_u32 v{vbr+st}, {64*KB}, v{t0}
        s_mul_i32 s81, s81, 3072
        s_add_u32 s81, s81, {96*KB}
        v_mov_b32 v{vwr+st}, s81""")
    rp = v("rp"); cc = v("cc")
    s(f"""v_bfe_u32 v{rp}, v0, 2, 2
    v_and_b32 v{cc}, 3, v0
    v_lshl_add_u32 v{t0}, v{hh}, 3, v{rp}
    v_mul_u32_u24 v{t0}, 192, v{t0}
    v_and_b32 v{t1}, 1, v{l4}
    v_lshl_add_u32 v{t0}, v{t1}, 5, v{t0}
    v_lshl_add_u32 v{t0}, v{cc}, 3, v{t0}""")
    for st in range(4): s(f"v_add_u32 v{vwr+st}, v{vwr+st}, v{t0}")
    vwd = v("vwd", 3)
    s("s_mul_i32 s81, s3, 192\ns_lshl_b32 s82, s77, 6\ns_mov_b32 s88, 0x15555556\ns_movk_i32 s89, 2752")
    for i in range(3):
        s(f"""v_add_u32 v{t0}, s81, v0
        v_add_u32 v{t0}, {64*i}, v{t0}
        v_mul_hi_u32 v{t1}, v{t0}, s88
        v_mul_u32_u24 v{t2}, 12, v{t1}
        v_sub_u32 v{t2}, v{t0}, v{t2}
        v_lshlrev_b32 v{t2}, 4, v{t2}
        v_mul_lo_u32 v{t1}, v{t1}, s89
        v_add3_u32 v{vwd+i}, v{t1}, v{t2}, s82""")
        if i: s(f"v_subrev_u32 v{vwd+i}, {1024*i}, v{vwd+i}")
    vcd = v("vcd", 4); v2d = v("v2d", 4)
    s(f"""s_lshl_b32 s81, s74, 6
    v_add_u32 v{t0}, s81, v{lam}
    v_lshlrev_b32 v{t0}, 10, v{t0}
    s_lshl_b32 s81, s3, 8
    v_add_u32 v{t0}, s81, v{t0}
    v_add_u32 v{vcd}, v{t0}, v{kE}
    v_add_u32 v{t1}, v{t0}, v{kO}
    v_add_u32 v{vcd+1}, 7168, v{t1}
    v_add_u32 v{vcd+2}, {2*7168}, v{vcd}
    v_add_u32 v{vcd+3}, {3*7168}, v{t1}
    s_mul_i32 s81, s3, 352
    v_add_u32 v{t0}, s81, v{lam}
    v_lshlrev_b32 v{t0}, 10, v{t0}
    v_lshlrev_b32 v{t1}, 1, v{l4}
    v_xor_b32 v{t1}, v{p8}, v{t1}
    v_lshl_add_u32 v{t0}, v{t1}, 4, v{t0}
    s_lshl_b32 s81, s74, 7
    v_add_u32 v{v2d}, s81, v{t0}""")
    for q in (1, 2, 3): s(f"v_add_u32 v{v2d+q}, {7168*q}, v{v2d}")
    V.free("kE", "kO", "p8", "lam")
    vsel = v("vsel", 12, 4)
    for t in range(3):
        s(f"v_cmp_eq_u32 vcc, {t}, v{rho}\nv_mov_b32 v{t0}, 0x3f803f80\nv_cndmask_b32 v{vsel+4*t}, 0, v{t0}, vcc")
        for k in (1, 2, 3): s(f"v_mov_b32 v{vsel+4*t+k}, v{vsel+4*t}")

    st = S()
    xf = v("xf", 16, 2); acc = v("sacc", 2, 2); mean = v("mean", 2, 2)
    for i in range(8):
        st(f"v_lshlrev_b32 v{xf+2*i}, 16, v{vst+i}\nv_and_b32 v{xf+2*i+1}, 0xffff0000, v{vst+i}")
    st(f"v_pk_add_f32 {vr(acc,2)}, {vr(xf,2)}, {vr(xf+2,2)}")
    for i in range(2, 8): st(f"v_pk_add_f32 {vr(acc,2)}, {vr(acc,2)}, {vr(xf+2*i,2)}")
    def red32(o, r):
        o(f"v_add_f32 v{r}, v{r}, v{r+1}")
        for k in (8, 4, 2, 1): o(f"v_add_f32_dpp v{r}, v{r}, v{r} row_ror:{k} row_mask:0xf bank_mask:0xf")
        o(f"v_mov_b32 v{r+1}, v{r}\nv_permlane16_swap_b32 v{r}, v{r+1}\nv_add_f32 v{r}, v{r}, v{r+1}")
    red32(st, acc)
    st(f"v_mul_f32 v{mean}, 0x3b000000, v{acc}")
    for i in range(8): st(f"v_pk_add_f32 {vr(xf+2*i,2)}, {vr(xf+2*i,2)}, {vr(mean,2)} op_sel_hi:[1,0] neg_lo:[0,1] neg_hi:[0,1]")
    st(f"v_pk_mul_f32 {vr(acc,2)}, {vr(xf,2)}, {vr(xf,2)}")
    for i in range(1, 8): st(f"v_pk_fma_f32 {vr(acc,2)}, {vr(xf+2*i,2)}, {vr(xf+2*i,2)}, {vr(acc,2)}")
    red32(st, acc)
    st(f"""v_mul_f32 v{acc}, 0x3b000000, v{acc}
    v_cvt_pk_bf16_f32 v{acc}, v{acc}, v{acc}
    v_lshlrev_b32 v{acc}, 16, v{acc}
    v_add_f32 v{acc}, 0x3727c5ac, v{acc}
    v_cvt_pk_bf16_f32 v{acc}, v{acc}, v{acc}
    v_lshlrev_b32 v{acc}, 16, v{acc}
    v_sqrt_f32 v{acc}, v{acc}
    v_cvt_pk_bf16_f32 v{acc}, v{mean}, v{acc}""")
    s.wait(vm=tk_st)
    s.extend(merge(st, XB[1]))
    s.wait(ds=0)
    s(f"""s_add_u32 s72, s72, 1
    s_mov_b32 s73, s72
    v_mov_b32 v{acc+1}, s72
    s_mov_b32 exec_lo, 1
    s_mov_b32 exec_hi, 1
    buffer_store_dwordx2 {vr(acc,2)}, v{vsst}, s[64:67], 0 offen sc1
    s_mov_b64 exec, -1""")
    V.free("xf", "sacc", "mean", "vst", "vsst")
    pw = S()
    Lr = v("Lr"); Li = v("Li"); PA = v("PA", 2, 2); PK = v("PK", 2, 2); P16 = v("P16", 2, 2); P32 = v("P32", 2, 2)
    PG = v("PG", 2, 2); PW0 = v("PW0", 2, 2); PW1 = v("PW1", 2, 2)
    pw(f"""v_lshlrev_b32 v{vlr}, 16, v{vlr}
    v_lshlrev_b32 v{vli}, 16, v{vli}
    v_lshlrev_b32 v{vld}, 16, v{vld}
    v_mul_f32 v{vld}, {LOG2E:#x}, v{vld}
    v_exp_f32 v{vld}, v{vld}
    v_cvt_pk_bf16_f32 v{vld}, v{vld}, v{vld}
    v_lshlrev_b32 v{vld}, 16, v{vld}
    v_mul_f32 v{Lr}, v{vld}, v{vlr}
    v_mul_f32 v{Li}, v{vld}, v{vli}
    v_mul_f32 v{Lr}, {LOG2E:#x}, v{Lr}
    v_mul_f32 v{Li}, 0.15915494, v{Li}""")
    def cpow(dst, n):
        pw(f"""v_mul_f32 v{t0}, {n}, v{Lr}
        v_mul_f32 v{t1}, {n}, v{Li}
        v_exp_f32 v{t0}, v{t0}
        v_fract_f32 v{t1}, v{t1}
        v_cos_f32 v{dst}, v{t1}
        v_sin_f32 v{dst+1}, v{t1}
        v_mul_f32 v{dst}, v{t0}, v{dst}
        v_mul_f32 v{dst+1}, -v{t0}, v{dst+1}""")
    cpow(PA, "1.0")
    pw(f"""v_add_f32 v{t0}, -1.0, v{PA}
    v_mul_f32 v{t1}, v{vlr}, v{vlr}
    v_fmac_f32 v{t1}, v{vli}, v{vli}
    v_rcp_f32 v{t1}, v{t1}
    v_mul_f32 v{PK}, v{t0}, v{vlr}
    v_fma_f32 v{PK}, -v{PA+1}, v{vli}, v{PK}
    v_mul_f32 v{PK+1}, v{t0}, v{vli}
    v_fmac_f32 v{PK+1}, v{PA+1}, v{vlr}
    v_add_f32 v{t1}, v{t1}, v{t1}
    v_mul_f32 v{PK}, v{PK}, v{t1}
    v_mul_f32 v{PK+1}, v{PK+1}, v{t1}""")
    cpow(P16, "0x41800000"); cpow(P32, "0x42000000")
    pw(f"s_lshl_b32 s83, s3, 5\nv_lshl_add_u32 v{t2}, v{hh}, 4, s83\nv_cvt_f32_u32 v{t2}, v{t2}")
    cpow(PG, f"v{t2}")
    vcg = v("vcg", 2)
    pw(f"""s_lshl_b32 s83, s3, 2
    v_lshl_add_u32 v{t3}, v{hh}, 1, s83
    s_lshl_b32 s82, s39, 13
    s_add_u32 s82, s82, {WS_CAR}
    v_lshlrev_b32 v{t2}, 4, v{rho}
    v_lshl_add_u32 v{t2}, v{t3}, 9, v{t2}
    v_add_u32 v{t2}, s82, v{t2}
    v_mov_b32 v{t1}, {OOB}
    v_cmp_gt_u32 s[90:91], s38, v{t3}
    v_add_u32 v{t0}, 1, v{t3}
    v_cmp_gt_u32 s[92:93], s38, v{t0}
    v_cndmask_b32 v{vcg}, v{t1}, v{t2}, s[90:91]
    v_cndmask_b32 v{vcg+1}, v{t1}, v{t2}, s[92:93]
    v_sub_u32 v{t3}, s38, v{t0}
    v_max_i32 v{t2}, 0, v{t3}
    v_lshlrev_b32 v{t2}, 7, v{t2}
    v_cvt_f32_u32 v{t2}, v{t2}""")
    cpow(PW0, f"v{t2}")
    pw(f"v_add_u32 v{t3}, -1, v{t3}\nv_max_i32 v{t2}, 0, v{t3}\nv_lshlrev_b32 v{t2}, 7, v{t2}\nv_cvt_f32_u32 v{t2}, v{t2}")
    cpow(PW1, f"v{t2}")
    s.wait(vm=tk_lam)
    s.extend(merge(pw, XB[2]))
    V.free("Lr", "Li", "vlr", "vli", "vld")
    stamp(s)

    accr = v("accr", 16, 4); acci = v("acci", 16, 4); duty = v("duty", 16, 4)
    bf = v("bf", 64, 4)
    def dma_w1(kc):
        g = []
        for i in range(3):
            a = S()
            if i == 0: a(f"s_add_u32 m0, s80, {W1SLOT(kc)}\ns_mov_b32 s81, {64*2752*kc}")
            a(f"buffer_load_dwordx4 v{vwd+i}, s[48:51], s81 offen" + (f" offset:{1024*i}" if i else "") + " lds"); g.append(a)
        return g
    W1 = [dma_w1(k) for k in range(8)]
    def last(g): return g[-1][-1]
    def p1s_reads(kc):
        o = S(); b = bf + 32 * (kc & 1)
        for st_ in range(4):
            o(f"ds_read_b128 {ar(16*kc+4*st_,4)}, v{vxr+st_} offset:{XSLOT(kc)}")
            o(f"ds_read_b128 {vr(b+8*st_,4)}, v{vbr+st_} offset:{BSLOT(kc)-64*KB}")
            o(f"ds_read_b128 {vr(b+8*st_+4,4)}, v{vbr+st_} offset:{BSLOT(kc)-64*KB+4096}")
        return o
    def p1s_mfma(kc):
        o = S(); b = bf + 32 * (kc & 1)
        for st_ in range(4):
            first = kc == 0 and st_ == 0
            x = ar(16 * kc + 4 * st_, 4)
            o(f"v_mfma_f32_32x32x16_bf16 {vr(accr,16)}, {x}, {vr(b+8*st_,4)}, {'0' if first else vr(accr,16)}")
            o(f"v_mfma_f32_32x32x16_bf16 {vr(acci,16)}, {x}, {vr(b+8*st_+4,4)}, {'0' if first else vr(acci,16)}")
            if st_ == 0:
                o(f"v_mfma_f32_32x32x16_bf16 {vr(duty,16)}, {vr(vsel,4)}, {vr(b,4)}, {'0' if first else vr(duty,16)}")
                o(f"v_mfma_f32_32x32x16_bf16 {vr(duty,16)}, {vr(vsel+4,4)}, {vr(b+4,4)}, {vr(duty,16)}")
        return o
    vtr = v("vtr"); vsg = v("vsg"); sg = v("sg", 2, 2)
    s(f"""v_bfe_u32 v{t0}, v{rho}, 2, 1
    v_lshlrev_b32 v{t0}, 4, v{t0}
    v_lshrrev_b32 v{t1}, 3, v{rho}
    v_lshl_add_u32 v{t0}, v{t1}, 2, v{t0}
    v_and_b32 v{t1}, 3, v{rho}
    v_add_u32 v{t0}, v{t0}, v{t1}
    s_lshl_b32 s81, s3, 5
    v_add_u32 v{vtr}, s81, v{t0}
    s_lshl_b32 s81, s38, 10
    s_add_u32 s81, s81, {WS_STAT}
    v_lshl_add_u32 v{vsg}, v{vtr}, 3, s81
    v_lshlrev_b32 v{vtr}, 2, v{vtr}""")
    gsg = S(); tk_sg = gsg(f"buffer_load_dwordx2 {vr(sg,2)}, v{vsg}, s[64:67], 0 offen sc1")
    for kc in range(8):
        s.wait(vm=last(XB[kc]), ds=0)
        s.barrier()
        if kc == 1: stamp(s)
        if kc <= 4: d = XB[kc + 3]
        elif kc == 5: d = W1[0] + W1[1]
        elif kc == 6: d = [gsg] + W1[2] + W1[3]
        else: d = W1[4] + W1[5]
        fill = list(p1s_reads(kc)) + d
        if kc == 0: s.extend(flat(fill))
        else: s.extend(merge(p1s_mfma(kc - 1), fill))
    s.wait(ds=0)
    xe = v("xe", 4, 4); we = v("we", 4, 4); rstd = v("rstd", 2, 2)
    sc = S()
    sc.wait(vm=tk_sg)
    chk = S(); chk(f"v_cmp_ne_u32 vcc, s72, v{sg+1}\ns_cbranch_vccnz L_slow_st"); chk.label("L_back_st")
    sc.append(chk)
    slow.label("L_slow_st")
    slow("s_mov_b32 s85, 0x8000")
    slow.label("L_slow_st2")
    slow(f"""s_nop 4
    buffer_load_dwordx2 {vr(sg,2)}, v{vsg}, s[64:67], 0 offen sc1
    s_sub_u32 s85, s85, 1
    s_cmp_eq_u32 s85, 0
    s_waitcnt vmcnt(0)
    s_cbranch_scc1 L_back_st
    v_cmp_ne_u32 vcc, s72, v{sg+1}
    s_cbranch_vccnz L_slow_st2
    s_branch L_back_st""")
    sc(f"""v_and_b32 v{t0}, 0xffff0000, v{sg}
    v_rcp_f32 v{rstd}, v{t0}
    v_add_u32 v{t2}, {S0_RSTD}, v{vtr}
    ds_write_b32 v{t2}, v{sg} offset:512
    ds_write_b32 v{t2}, v{rstd}
    v_cmp_gt_u32 vcc, 32, v0
    v_xor_b32 v{t1}, 0x8000, v{sg}
    v_and_b32 v{t1}, 0xffff, v{t1}
    v_lshl_or_b32 v{t1}, v{t1}, 16, v{t1}
    v_lshrrev_b32 v{t0}, 16, v{sg}
    v_cndmask_b32 v{xe}, 0, v{t1}, vcc
    v_cndmask_b32 v{xe+1}, 0, v{t0}, vcc
    v_mov_b32 v{xe+2}, 0
    v_mov_b32 v{xe+3}, 0
    v_mov_b32 v{we+1}, 0
    v_mov_b32 v{we+2}, 0
    v_mov_b32 v{we+3}, 0""")
    s.extend(merge(p1s_mfma(7), W1[6] + W1[7] + list(sc)))
    V.free("vxr", "vbr", "vxd", "vbd", "vwd", "bf", "sg", "vsg", "vtr")
    if P["touch"]: V.free("tb")
    stamp(s)
    vcs = v("vcs")
    s(f"""s_lshl_b32 s81, s3, 2
    v_lshl_add_u32 v{vcs}, v{rho}, 4, s81
    v_add_u32 v{t2}, {S0_BCS}, v{vcs}
    s_mov_b32 exec_hi, 0
    ds_write_b32 v{t2}, v{duty}
    ds_write_b32 v{t2}, v{duty+1} offset:512
    s_mov_b64 exec, -1""")

    def dma_c(su):
        u = su >> 1; comp = u & 1; pi = u >> 1; dh = su & 1
        g = []
        for q in range(4):
            a = S()
            if q == 0: a(f"s_add_u32 m0, s78, {RING[C_SL[su]]}\ns_mov_b32 s81, {32768*dh+128*pi}")
            a(f"buffer_load_dwordx4 v{vcd+q}, s[{52+4*comp}:{55+4*comp}], s81 offen" + (f" offset:{1024*q}" if q else "") + " lds"); g.append(a)
        return g
    def dma_w2(f):
        g = []
        for q in range(4):
            a = S()
            if q == 0: a(f"s_add_u32 m0, s78, {RING[W2_SL[f]]}\ns_mov_b32 s81, {32768*f}")
            a(f"buffer_load_dwordx4 v{v2d+q}, s[60:63], s81 offen" + (f" offset:{1024*q}" if q else "") + " lds"); g.append(a)
        return g
    CD = [dma_c(k) for k in range(8)]; WD = [dma_w2(k) for k in range(11)]
    vcr = v("vcr", 2); v2r = v("v2r", 8)
    s(f"""v_and_b32 v{t0}, 15, v0
    v_lshrrev_b32 v{t1}, 1, v{t0}
    v_xor_b32 v{t1}, v{t1}, v{l4}
    v_lshlrev_b32 v{t0}, 7, v{t0}
    s_add_u32 s81, s78, {48*KB}
    v_add_u32 v{t0}, s81, v{t0}
    v_lshl_add_u32 v{vcr}, v{t1}, 4, v{t0}
    v_xor_b32 v{vcr+1}, 64, v{vcr}
    v_and_b32 v{t0}, 1, v{l4}
    v_lshrrev_b32 v{t1}, 1, v{rp}
    v_lshl_add_u32 v{t1}, v{t0}, 1, v{t1}
    v_lshl_add_u32 v{t0}, v{t0}, 2, v{rp}
    v_lshl_add_u32 v{t0}, v{hh}, 4, v{t0}
    v_lshlrev_b32 v{t0}, 7, v{t0}
    v_lshl_add_u32 v{t0}, v{cc}, 3, v{t0}
    v_add_u32 v{t0}, s81, v{t0}""")
    for n in range(4):
        s(f"""v_xor_b32 v{t2}, {n}, v{t1}
        v_lshl_add_u32 v{v2r+n}, v{t2}, 5, v{t0}
        v_add_u32 v{v2r+4+n}, {64*KB}, v{v2r+n}""")
    def rd_c(su):
        u = su >> 1; comp = u & 1; pi = u >> 1; dh = su & 1
        o = S(); o.wait(vm=last(CD[su]))
        for sp in range(2):
            stp = 2 * (2 * pi + sp) + comp
            for b in range(2):
                o(f"ds_read_b128 {ar(128+16*stp+4*(2*dh+b),4)}, v{vcr+sp} offset:{RING[C_SL[su]]-48*KB+2048*b}")
        return o
    def rd_w2(f, wait=True):
        o = S()
        if wait: o.wait(vm=last(WD[f]))
        base = RING[W2_SL[f]] - 48 * KB; setb = 0
        if base >= 64 * KB: base -= 64 * KB; setb = 4
        d = 16 * f if f < 8 else 128 + 16 * (f - 8)
        for n in range(4):
            o(f"ds_read_b64_tr_b16 {ar(d+4*n,2)}, v{v2r+setb+n} offset:{base}")
            o(f"ds_read_b64_tr_b16 {ar(d+4*n+2,2)}, v{v2r+setb+n} offset:{base+1024}")
        return o
    accm = v("accm", 48, 4); wf = v("wf", 36, 4)
    def p1m_reads(n):
        kc, st_ = divmod(n, 4); b = wf + 12 * (n % 3)
        base = W1SLOT(kc) - (96 * KB if kc < 5 else 0)
        o = S()
        if n == 20:
            for k in range(4): o(f"v_subrev_u32 v{vwr+k}, {96*KB}, v{vwr+k}")
        for t in range(3):
            o(f"ds_read_b64_tr_b16 {vr(b+4*t,2)}, v{vwr+st_} offset:{base+64*t}")
            o(f"ds_read_b64_tr_b16 {vr(b+4*t+2,2)}, v{vwr+st_} offset:{base+64*t+768}")
        return o
    def p1m_mfma(n):
        kc, st_ = divmod(n, 4); b = wf + 12 * (n % 3)
        o = S(); x = ar(16 * kc + 4 * st_, 4)
        for t in range(3):
            o(f"v_mfma_f32_32x32x16_bf16 {vr(accm+16*t,16)}, {vr(b+4*t,4)}, {x}, {'0' if n == 0 else vr(accm+16*t,16)}")
            if st_ == 0:
                o(f"v_mfma_f32_32x32x16_bf16 {vr(duty,16)}, {vr(vsel+4*t,4)}, {vr(b+4*t,4)}, {'0' if (n == 0 and t == 0) else vr(duty,16)}")
        return o
    RD = [p1m_reads(n) for n in range(32)]

    UU = lambda i: (accr + i) if i % 2 == 0 else (acci + i - 1)
    rs16 = v("rs16", 16, 4); tp = v("tp", 8, 4); e = v("e", 2, 2); elo = v("elo", 2, 2); Q = v("Q", 2, 2)
    def cfma(o, dst, A, H, Uadd, tmp):
        o(f"v_pk_fma_f32 {vr(tmp,2)}, {vr(A,2)}, {vr(H,2)}, {vr(Uadd,2)} op_sel:[0,0,0] op_sel_hi:[0,1,1]")
        o(f"v_pk_fma_f32 {vr(dst,2)}, {vr(A,2)}, {vr(H,2)}, {vr(tmp,2)} op_sel:[1,1,0] op_sel_hi:[1,0,1] neg_lo:[1,0,0]")
    def cmul(o, dst, A, H, tmp):
        o(f"v_pk_mul_f32 {vr(tmp,2)}, {vr(A,2)}, {vr(H,2)} op_sel:[0,0] op_sel_hi:[0,1]")
        o(f"v_pk_fma_f32 {vr(dst,2)}, {vr(A,2)}, {vr(H,2)}, {vr(tmp,2)} op_sel:[1,1,0] op_sel_hi:[1,0,1] neg_lo:[1,0,0]")
    def split_cs(o, src4, dst):
        o(f"""v_add_f32 v{src4}, v{src4}, v{src4+1}
        v_add_f32 v{src4+2}, v{src4+2}, v{src4+3}
        v_add_f32 v{src4}, v{src4}, v{src4+2}
        v_cvt_pk_bf16_f32 v{src4+1}, v{src4}, v{src4}
        v_lshlrev_b32 v{src4+2}, 16, v{src4+1}
        v_sub_f32 v{src4}, v{src4}, v{src4+2}
        v_cvt_pk_bf16_f32 v{dst}, v{src4+2}, v{src4}""")
    A0 = S()
    A0(f"v_lshlrev_b32 v{t2}, 4, v{rho}\nv_add_u32 v{t2}, {S0_BCS}, v{t2}")
    A0(f"ds_read_b128 {vr(tp,4)}, v{t2}")
    k1 = A0(f"ds_read_b128 {vr(tp+4,4)}, v{t2} offset:512")
    A0(f"s_lshl_b32 s82, s3, 7\ns_add_u32 s82, s82, {S0_RSTD}\nv_lshl_add_u32 v{t3}, v{hh}, 6, s82")
    for i in range(4): k2 = A0(f"ds_read_b128 {vr(rs16+4*i,4)}, v{t3} offset:{16*i}")
    A0.wait(ds=k1)
    split_cs(A0, tp, we)
    A0(f"v_mfma_f32_32x32x16_bf16 {vr(accr,16)}, {vr(xe,4)}, {vr(we,4)}, {vr(accr,16)}")
    split_cs(A0, tp + 4, we)
    A0(f"v_mfma_f32_32x32x16_bf16 {vr(acci,16)}, {vr(xe,4)}, {vr(we,4)}, {vr(acci,16)}")
    B1 = S(); B1.wait(ds=k2)
    for pb in range(0, 16, 2):
        for pi_ in range(2):
            B1(f"v_pk_mul_f32 {vr(tp+2*pi_,2)}, {vr(PK,2)}, {vr(accr+pb,2)} op_sel:[0,{pi_}] op_sel_hi:[1,{pi_}]")
            B1(f"v_pk_fma_f32 {vr(tp+2*pi_,2)}, {vr(PK,2)}, {vr(acci+pb,2)}, {vr(tp+2*pi_,2)} op_sel:[1,{pi_},0] op_sel_hi:[0,{pi_},1] neg_hi:[1,0,0]")
        for pi_ in range(2):
            i = pb + pi_
            B1(f"v_pk_mul_f32 {vr(UU(i),2)}, {vr(tp+2*pi_,2)}, {vr(rs16+pb,2)} op_sel:[0,{pi_}] op_sel_hi:[1,{pi_}]")
            if i == 1: cfma(B1, e, PA, UU(0), UU(1), tp + 4)
            elif i > 1: cfma(B1, e, PA, e, UU(i), tp + 4)
    B1(f"""v_mov_b32 v{elo}, v{e}
    v_mov_b32 v{elo+1}, v{e+1}
    v_permlane32_swap_b32 v{elo}, v{e}
    v_permlane32_swap_b32 v{elo+1}, v{e+1}""")
    cfma(B1, e, P16, elo, e, tp)
    B1(f"""s_lshl_b32 s82, s3, 3
    s_add_u32 s82, s82, {S0_WT}
    v_lshl_add_u32 v{t2}, v{rho}, 5, s82""")
    kW = B1(f"ds_write_b64 v{t2}, {vr(e,2)}")
    B1.wait(ds=kW)
    C1 = S()
    C1(f"v_lshlrev_b32 v{t2}, 5, v{rho}\nv_add_u32 v{t2}, {S0_WT}, v{t2}")
    C1(f"ds_read_b128 {vr(tp,4)}, v{t2}")
    k1 = C1(f"ds_read_b128 {vr(tp+4,4)}, v{t2} offset:16")
    C1(f"""s_lshl_b32 s82, s39, 4
    s_add_u32 s82, s82, s38
    s_lshl_b32 s82, s82, 9
    s_add_u32 s82, s82, {WS_CAR}
    v_lshl_add_u32 v{t3}, v{rho}, 4, s82
    s_cmp_eq_u32 s3, 1
    s_cselect_b64 s[6:7], -1, 0
    s_cmp_eq_u32 s3, 2
    s_cselect_b64 s[8:9], -1, 0
    s_cmp_eq_u32 s3, 3
    s_cselect_b64 s[10:11], -1, 0
    s_lshl_b32 s82, s3, 3
    s_lshl_b32 s12, 0xff, s82""")
    C1.wait(ds=k1)
    C1(f"v_cndmask_b32 v{Q}, 0, v{tp}, s[6:7]\nv_cndmask_b32 v{Q+1}, 0, v{tp+1}, s[6:7]")
    cfma(C1, tp + 2, P32, tp, tp + 2, e)
    C1(f"v_cndmask_b32 v{Q}, v{Q}, v{tp+2}, s[8:9]\nv_cndmask_b32 v{Q+1}, v{Q+1}, v{tp+3}, s[8:9]")
    cfma(C1, tp + 4, P32, tp + 2, tp + 4, e)
    C1(f"v_cndmask_b32 v{Q}, v{Q}, v{tp+4}, s[10:11]\nv_cndmask_b32 v{Q+1}, v{Q+1}, v{tp+5}, s[10:11]")
    cfma(C1, tp + 6, P32, tp + 4, tp + 6, e)
    pub = S()
    pub(f"""v_mov_b32 v{tp}, v{tp+6}
    v_mov_b32 v{tp+1}, s72
    v_mov_b32 v{tp+2}, v{tp+7}
    v_mov_b32 v{tp+3}, s72
    s_mov_b32 exec_lo, s12
    s_mov_b32 exec_hi, 0
    buffer_store_dwordx4 {vr(tp,4)}, v{t3}, s[64:67], 0 offen sc1
    s_mov_b64 exec, -1""")
    C1.append(pub)
    cfma(C1, tp + 4, P16, Q, elo, e)
    C1(f"v_cmp_gt_u32 vcc, 32, v0\nv_cndmask_b32 v{Q}, v{tp+4}, v{Q}, vcc\nv_cndmask_b32 v{Q+1}, v{tp+5}, v{Q+1}, vcc")
    cg = rs16
    G0 = S()
    G0(f"buffer_load_dwordx4 {vr(cg,4)}, v{vcg}, s[64:67], 0 offen sc1")
    tk_cg = G0(f"buffer_load_dwordx4 {vr(cg+4,4)}, v{vcg+1}, s[64:67], 0 offen offset:512 sc1")
    def cg_check(o):
        o(f"""v_cmp_ne_u32 s[6:7], s72, v{cg+1}
        v_cmp_ne_u32 s[8:9], s72, v{cg+3}
        v_cmp_ne_u32 s[10:11], s72, v{cg+5}
        v_cmp_ne_u32 s[12:13], s72, v{cg+7}
        s_or_b64 s[6:7], s[6:7], s[8:9]
        s_and_b64 s[6:7], s[6:7], s[90:91]
        s_or_b64 s[10:11], s[10:11], s[12:13]
        s_and_b64 s[10:11], s[10:11], s[92:93]
        s_or_b64 s[6:7], s[6:7], s[10:11]""")
    D1 = S(); D1.wait(vm=tk_cg)
    chk = S(); cg_check(chk); chk("s_cbranch_scc1 L_slow_cg"); chk.label("L_back_cg"); D1.append(chk)
    slow.label("L_slow_cg")
    slow("s_mov_b32 s85, 0x8000")
    slow.label("L_slow_cg2")
    slow(f"""buffer_load_dwordx4 {vr(cg,4)}, v{vcg}, s[64:67], 0 offen sc1
    buffer_load_dwordx4 {vr(cg+4,4)}, v{vcg+1}, s[64:67], 0 offen offset:512 sc1
    s_sub_u32 s85, s85, 1
    s_cmp_eq_u32 s85, 0
    s_waitcnt vmcnt(0)
    s_cbranch_scc1 L_back_cg""")
    cg_check(slow)
    slow("s_cbranch_scc1 L_slow_cg2\ns_branch L_back_cg")
    D1(f"v_mov_b32 v{cg+1}, v{cg+2}\nv_mov_b32 v{cg+5}, v{cg+6}")
    cmul(D1, cg + 2, PW0, cg, tp)
    cfma(D1, cg + 2, PW1, cg + 4, cg + 2, tp)
    D1(f"""s_lshl_b32 s82, s3, 4
    s_add_u32 s82, s82, {S1_CP}
    v_lshl_add_u32 v{t2}, v{rho}, 6, s82
    v_lshl_add_u32 v{t2}, v{hh}, 3, v{t2}""")
    kP = D1(f"ds_write_b64 v{t2}, {vr(cg+2,2)}")
    D1.wait(ds=kP)
    E1 = S()
    E1(f"v_lshlrev_b32 v{t2}, 6, v{rho}\nv_add_u32 v{t2}, {S1_CP}, v{t2}")
    for i in range(4): k1 = E1(f"ds_read_b128 {vr(cg+4*i,4)}, v{t2} offset:{16*i}")
    vtw = v("vtw"); vtr2 = v("vtr2"); vhs = v("vhs")
    E1(f"""s_add_u32 s82, s79, {S1_T}
    v_lshl_add_u32 v{vtw}, v{rho}, 6, s82
    v_lshl_add_u32 v{vtw}, v{hh}, 5, v{vtw}
    v_lshl_add_u32 v{t0}, v{l4}, 3, v{rp}
    v_lshl_add_u32 v{vtr2}, v{t0}, 6, s82
    v_and_b32 v{t0}, 1, v{cc}
    v_lshl_add_u32 v{vtr2}, v{t0}, 5, v{vtr2}
    v_lshrrev_b32 v{t0}, 1, v{cc}
    v_lshl_add_u32 v{vtr2}, v{t0}, 3, v{vtr2}
    s_lshl_b32 s82, s76, 4
    s_add_u32 s82, s82, s39
    s_lshl_b32 s82, s82, 13
    s_and_b32 s83, s3, 1
    s_lshl_b32 s83, s83, 11
    s_add_u32 s82, s82, s83
    s_add_u32 s82, s82, {WS_Hs}
    v_lshl_add_u32 v{vhs}, v0, 4, s82""")
    E1.wait(ds=k1)
    for a_, b_ in ((0, 2), (4, 6), (8, 10), (12, 14), (0, 4), (8, 12), (0, 8)):
        E1(f"v_pk_add_f32 {vr(cg+a_,2)}, {vr(cg+a_,2)}, {vr(cg+b_,2)}")
    cfma(E1, e, PG, cg, Q, tp)
    pk = rs16
    for i in range(16):
        cfma(E1, UU(i), PA, e if i == 0 else UU(i - 1), UU(i), tp)
        if i & 1:
            E1(f"v_cvt_pk_bf16_f32 v{pk+i//2}, v{UU(i-1)}, v{UU(i)}")
            E1(f"v_cvt_pk_bf16_f32 v{pk+8+i//2}, v{UU(i-1)+1}, v{UU(i)+1}")
    hf = accr
    toks = []
    for comp in range(2):
        E1(f"ds_write_b128 v{vtw}, {vr(pk+8*comp,4)}\nds_write_b128 v{vtw}, {vr(pk+8*comp+4,4)} offset:16")
        for mb in range(2):
            E1(f"ds_read_b64_tr_b16 {vr(hf+8*comp+4*mb,2)}, v{vtr2} offset:{16*mb}")
            k1 = E1(f"ds_read_b64_tr_b16 {vr(hf+8*comp+4*mb+2,2)}, v{vtr2} offset:{16*mb+256}")
        toks.append(k1)
    E1("s_movk_i32 s82, 4096")
    for comp in range(2):
        E1.wait(ds=toks[comp])
        for mb in range(2):
            tk_hs = E1(f"buffer_store_dwordx4 {vr(hf+8*comp+4*mb,4)}, v{vhs}, s[64:67], {'s82' if comp else '0'} offen offset:{1024*mb} sc1")
    vfl = v("vfl"); vtag = v("vtag")
    def flag(o, base, tok):
        o.wait(vm=tok)
        a = S()
        a(f"""s_mov_b64 exec, 1
        buffer_store_dword v{vtag}, v{vfl}, s[64:67], 0 offen offset:{base} sc1
        s_mov_b64 exec, -1""")
        o.append(a)
    F1 = S()
    F1(f"""s_lshl_b32 s82, s76, 4
    s_add_u32 s82, s82, s39
    s_lshl_b32 s82, s82, 1
    s_and_b32 s83, s3, 1
    s_add_u32 s82, s82, s83
    s_lshl_b32 s82, s82, 2
    s_add_u32 s82, s82, {WS_FLs}
    v_mov_b32 v{vfl}, s82
    v_mov_b32 v{vtag}, s72""")
    flag(F1, 0, tk_hs)

    g = P["gath"]
    fills = {n: [] for n in range(-2, 33)}
    def add(n, x): fills[n].extend(x if not isinstance(x, S) else list(x))
    blocks = {}
    q = []
    def Dm(gr, at): q.append(("d", gr, at))
    def Rd(o, at): q.append(("r", o, at))
    Dm(CD[0], -2); Dm(CD[1], -2); Dm(CD[2], -1)
    for su in range(8):
        Rd(rd_c(su), 1 + su + (su + 1) // 2)
        if su + 3 < 8: Dm(CD[su + 3], 2 + su + (su + 1) // 2)
        elif su == 5: Dm(WD[0], 10)
        elif su == 6: Dm(WD[1], 11)
        elif su == 7: Dm(WD[2], 13)
    plan = [(3, 14), ("r0", 15), (4, 16), ("r1", 17), (5, 18), ("r2", 19), (6, 20), ("r3", 21), (7, 22), (8, 24), ("r4", 24), (9, 26), ("r5", 27), (10, 28), ("r6", 30)]
    for x, at in plan:
        if isinstance(x, str): Rd(rd_w2(int(x[1:])), at)
        else: Dm(WD[x], at)
    lastread = {}
    for kind, o, at in q:
        if kind == "r":
            add(at, [w_ for w_ in o])
        else:
            add(at, o)
    return_info = {}
    def reuse_wait(prev_reads):
        w_ = S(); w_.wait(ds=prev_reads[-1]); return w_
    fills = {n: [] for n in range(-2, 33)}
    owner = {}
    rdmap = {}
    for kind, o, at in q:
        if kind == "r":
            for k_, gr in list(owner.items()):
                if o[0].vm is last(gr): rdmap[k_] = o
            add(at, o)
        else:
            if o in CD: sl = C_SL[CD.index(o)]
            else: sl = W2_SL[WD.index(o)]
            if sl in owner:
                assert sl in rdmap, ("slot reused before read", sl)
                add(at, reuse_wait(rdmap.pop(sl)))
            owner[sl] = o
            add(at, o)
    add(4 * g + 0, G0)
    add(28, F1) if g <= 3 else add(31, F1)
    s.wait(vm=last(W1[0]), ds=0)
    s.barrier()
    s.extend(flat(merge(list(RD[0]) + list(A0), fills[-2])))
    s.extend(flat(merge(list(RD[1]), fills[-1])))
    for n in range(32):
        kc, st_ = divmod(n, 4)
        pre = S()
        if st_ == 2 and kc < 7:
            if kc == 0: s.extend(flat(merge(list(B1), fills[n]))); fills[n] = []; stamp(s)
            if kc == g + 1 - 0 - 0 and True: s.extend(flat(list(D1)))
            s.wait(vm=last(W1[kc + 1]))
            s.barrier()
            if kc == 0: s.extend(flat(list(C1)))
            if kc == g + 1: s.extend(flat(merge(list(E1), fills[n]))); fills[n] = []; stamp(s)
        s.wait(ds=RD[n][-1])
        f = (list(RD[n + 2]) if n + 2 < 32 else []) + fills[n]
        s.extend(flat(merge(p1m_mfma(n), f)))
    stamp(s)
    V.free("e", "elo", "Q", "vtw", "vtr2", "vhs", "PA", "PK", "P16", "P32", "PG", "PW0", "PW1", "vcg", "wf", "vwr", "vcd", "v2d", "vcr", "vsel", "accr", "acci")
    s(f"v_add_u32 v{t2}, {S2_WCS}, v{vcs}\ns_mov_b32 exec_hi, 0")
    for t in range(3): k1 = s(f"ds_write_b32 v{t2}, v{duty+t} offset:{512*t}")
    s("s_mov_b64 exec, -1")
    s.extend(rd_w2(7))
    vxo = v("vxo"); xb = v("xb", 8, 2); pst = v("pst", 4)
    s(f"""s_lshl_b32 s82, s75, 6
    s_lshr_b32 s83, s3, 1
    s_lshl_b32 s83, s83, 5
    s_add_u32 s82, s82, s83
    s_and_b32 s83, s3, 1
    s_lshl_b32 s83, s83, 3
    s_add_u32 s82, s82, s83
    v_add_u32 v{t0}, s82, v{l4}
    v_and_b32 v{t1}, 15, v0
    s_lshl_b32 s83, s74, 7
    v_lshl_add_u32 v{t1}, v{t1}, 3, s83
    v_lshl_add_u32 v{vxo}, v{t0}, 10, v{t1}
    v_and_b32 v{t0}, 127, v{t0}
    v_lshlrev_b32 v{t0}, 2, v{t0}
    v_add_u32 v{t0}, {S0_PK}, v{t0}""")
    ROFF = (0, 16, 4, 20)
    for i in range(4):
        s(f"s_mov_b32 s81, {ROFF[i]*1024}")
        tk_xb = s(f"buffer_load_dwordx2 {vr(xb+2*i,2)}, v{vxo}, s[40:43], s81 offen")
        s(f"ds_read_b32 v{pst+i}, v{t0} offset:{4*ROFF[i]}")
    s.wait(ds=0)
    s.barrier()
    s(f"v_lshlrev_b32 v{t2}, 4, v{rho}\nv_add_u32 v{t2}, {S2_WCS}, v{t2}")
    kk = []
    for t in range(3): kk.append(s(f"ds_read_b128 {vr(rs16+4*t,4)}, v{t2} offset:{512*t}"))
    vHs = v("vHs")
    s(f"""s_mul_i32 s82, s76, 43
    s_add_u32 s82, s82, s77
    s_lshl_b32 s82, s82, 12
    s_and_b32 s83, s3, 1
    s_lshl_b32 s83, s83, 11
    s_add_u32 s82, s82, s83
    s_add_u32 s82, s82, {WS_Hm}
    v_lshrrev_b32 v{t0}, 4, v{rho}
    v_lshl_add_u32 v{vHs}, v{t0}, 10, s82
    v_lshl_add_u32 v{vHs}, v{hh}, 8, v{vHs}
    v_and_b32 v{t0}, 15, v0
    v_lshl_add_u32 v{vHs}, v{t0}, 4, v{vHs}
    s_cmp_lt_u32 s39, 11
    s_cselect_b32 s83, 8192, {OOB}
    s_movk_i32 s82, 4096""")
    for t in range(3):
        s.wait(ds=kk[t]) if t else s.wait(ds=kk[t], vm=tk_small)
        split_cs(s, rs16 + 4 * t, we)
        s(f"v_mov_b32 v{we+1}, v{vb1+t}")
        s(f"v_mfma_f32_32x32x16_bf16 {vr(accm+16*t,16)}, {vr(we,4)}, {vr(xe,4)}, {vr(accm+16*t,16)}")
    hp = v("hp", 24, 4)
    for t in range(3):
        for k in range(8):
            a_ = accm + 16 * t + 2 * k
            s(f"""v_max_f32 v{a_}, 0, v{a_}
            v_max_f32 v{a_+1}, 0, v{a_+1}
            v_pk_mul_f32 {vr(a_,2)}, {vr(a_,2)}, {vr(rstd,2)} op_sel_hi:[1,0]
            v_pk_mul_f32 {vr(a_,2)}, {vr(a_,2)}, {vr(a_,2)}
            v_cvt_pk_bf16_f32 v{hp+8*t+k}, v{a_}, v{a_+1}""")
            if k & 3 == 3:
                tk_Hs = s(f"buffer_store_dwordx4 {vr(hp+8*t+k-3,4)}, v{vHs}, s[64:67], {('0','s82','s83')[t]} offen offset:{512*(k>>2)} sc1")
    stamp(s)
    V.free("accm", "xe", "we", "rstd", "rs16", "tp", "duty", "vb1", "vcs", "vHs", "hp")

    acc2 = v("acc2", 64, 4); NR = 6; ring = v("ring", 16 * NR, 4); base = v("base", 16, 4)
    vas = v("vas"); vam = v("vam")
    s(f"""s_lshl_b32 s82, s75, 17
    s_lshl_b32 s83, s3, 15
    s_add_u32 s82, s82, s83
    s_add_u32 s82, s82, {WS_Hs}
    v_lshl_add_u32 v{vas}, v0, 4, s82
    s_mul_i32 s82, s75, 43
    s_mul_i32 s83, s3, 11
    s_add_u32 s82, s82, s83
    s_lshl_b32 s82, s82, 12
    s_add_u32 s82, s82, {WS_Hm}
    v_lshl_add_u32 v{vam}, v0, 4, s82
    s_cmp_lt_u32 s3, 3
    s_cselect_b32 s84, 40960, {OOB}
    s_lshl_b32 s82, s75, 7
    s_lshl_b32 s83, s3, 5
    s_add_u32 s83, s83, s82
    s_add_u32 s83, s83, {WS_FLs}
    s_add_u32 s86, s36, s83
    s_addc_u32 s87, s37, 0
    s_lshl_b32 s83, s3, 5
    s_max_u32 s83, s83, 8
    s_sub_u32 s83, s83, 8
    s_add_u32 s83, s83, s82
    s_add_u32 s83, s83, {WS_FLm}
    s_add_u32 s88, s36, s83
    s_addc_u32 s89, s37, 0""")
    def poll(o, nm, ld, npairs):
        a = S()
        a.label(f"L_chk_{nm}")
        a.wait(ds=0)
        for i in range(npairs): a(f"s_cmp_eq_u64 s[{4+2*i}:{5+2*i}], s[72:73]\ns_cbranch_scc0 L_slow_{nm}")
        a.label(f"L_back_{nm}")
        o.append(a)
        slow.label(f"L_slow_{nm}")
        slow(f"""s_sub_u32 s85, s85, 1
        s_cmp_eq_u32 s85, 0
        s_cbranch_scc1 L_back_{nm}
        {ld}
        s_branch L_chk_{nm}""")
    ld_s = "s_load_dwordx8 s[4:11], s[86:87], 0 glc"; ld_m = "s_load_dwordx16 s[4:19], s[88:89], 0 glc"
    s("s_mov_b32 s85, 0x8000"); s(ld_s)
    s.wait(vm=tk_xb)
    dk = v("dk", 8, 2)
    for k in range(2):
        s(f"""v_lshlrev_b32 v{dk+2*k}, 16, v{vdk+k}
        v_and_b32 v{dk+2*k+1}, 0xffff0000, v{vdk+k}
        v_lshlrev_b32 v{dk+4+2*k}, 16, v{vb2+k}
        v_and_b32 v{dk+4+2*k+1}, 0xffff0000, v{vb2+k}""")
    u = v("u", 6, 2)
    for i in range(4):
        s(f"""v_and_b32 v{u+1}, 0xffff0000, v{pst+i}
        v_rcp_f32 v{u+1}, v{u+1}
        v_lshlrev_b32 v{u}, 16, v{pst+i}""")
        for k in range(2):
            b_ = base + 4 * i + 2 * k
            s(f"""v_lshlrev_b32 v{b_}, 16, v{xb+2*i+k}
            v_and_b32 v{b_+1}, 0xffff0000, v{xb+2*i+k}
            v_pk_add_f32 {vr(u+2,2)}, {vr(b_,2)}, {vr(u,2)} op_sel_hi:[1,0] neg_lo:[0,1] neg_hi:[0,1]
            v_cvt_pk_bf16_f32 v{u+4}, v{u+2}, v{u+3}
            v_lshlrev_b32 v{u+2}, 16, v{u+4}
            v_and_b32 v{u+3}, 0xffff0000, v{u+4}
            v_pk_mul_f32 {vr(u+2,2)}, {vr(u+2,2)}, {vr(u,2)} op_sel:[0,1] op_sel_hi:[1,1]
            v_cvt_pk_bf16_f32 v{u+4}, v{u+2}, v{u+3}
            v_lshlrev_b32 v{u+2}, 16, v{u+4}
            v_and_b32 v{u+3}, 0xffff0000, v{u+4}
            v_pk_mul_f32 {vr(u+2,2)}, {vr(u+2,2)}, {vr(dk+2*k,2)}
            v_cvt_pk_bf16_f32 v{u+4}, v{u+2}, v{u+3}
            v_lshlrev_b32 v{u+2}, 16, v{u+4}
            v_and_b32 v{u+3}, 0xffff0000, v{u+4}
            v_pk_add_f32 {vr(b_,2)}, {vr(b_,2)}, {vr(u+2,2)}
            v_pk_add_f32 {vr(b_,2)}, {vr(b_,2)}, {vr(dk+4+2*k,2)}""")
    V.free("dk", "u", "xb", "pst", "vdk", "vb2")
    def a2(i):
        g_ = []; d = ring + 16 * (i % NR)
        for b in range(4):
            a = S()
            if i < 8:
                if b == 0: a(f"s_mov_b32 s81, {4096*i}")
                so = "s81"; va = vas
            else:
                f = i - 8; va = vam
                if f == 10: so = "s84"
                else:
                    so = "s81"
                    if b == 0: a(f"s_mov_b32 s81, {4096*f}")
            a(f"buffer_load_dwordx4 {vr(d+4*b,4)}, v{va}, s[64:67], {so} offen offset:{1024*b} sc1"); g_.append(a)
        return g_
    A2 = [a2(i) for i in range(19)]
    def p2_mfma(i):
        o = S(); d = ring + 16 * (i % NR)
        if i < 8: wb = 128 + 16 * i
        else:
            f = i - 8; wb = 16 * f if f < 8 else 128 + 16 * (f - 8)
        for b in range(4):
            for n in range(4):
                c_ = acc2 + 16 * b + 4 * n
                o(f"v_mfma_f32_16x16x32_bf16 {vr(c_,4)}, {ar(wb+4*n,4)}, {vr(d+4*b,4)}, {'0' if i == 0 else vr(c_,4)}")
        return o
    tmp = S(); poll(tmp, "s", ld_s, 4); s.extend(flat(tmp))
    stamp(s)
    s.extend(flat(A2[0] + A2[1]))
    tmp = S(); s(f"v_add_u32 v{vfl}, {WS_FLm-WS_FLs}, v{vfl}"); flag(tmp, 0, tk_Hs); s.extend(flat(tmp))
    s.extend(flat(A2[2] + A2[3]))
    s.barrier()
    vrw = v("vrw", 4); vrr = v("vrr", 4)
    ad = S()
    ad(f"v_and_b32 v{t0}, 15, v0\nv_lshlrev_b32 v{t1}, 8, v{t0}\nv_add_u32 v{t1}, s78, v{t1}")
    for n in range(4):
        ad(f"v_add_u32 v{t2}, {4*n}, v{l4}\nv_xor_b32 v{t2}, v{t2}, v{t0}\nv_lshl_add_u32 v{vrw+n}, v{t2}, 4, v{t1}")
    ad("s_lshl_b32 s82, s3, 14")
    for i in range(4):
        ad(f"v_add_u32 v{t2}, {4*i}, v{l4}\nv_xor_b32 v{t3}, v{t2}, v{t0}\nv_lshlrev_b32 v{t3}, 4, v{t3}\nv_lshl_add_u32 v{t3}, v{t2}, 8, v{t3}\nv_add_u32 v{vrr+i}, s82, v{t3}")
    ad(f"v_lshlrev_b32 v{vxo}, 1, v{vxo}")
    late = {8 + 1: rd_w2(8), 8 + 2: rd_w2(9), 8 + 3: rd_w2(10)}
    for i in range(19):
        f = []
        if i == 1: f += list(ad)
        if i == 2:
            a = S(); a("s_mov_b32 s85, 0x8000"); a(ld_m); f.append(a)
        if i == 4:
            tmp = S(); poll(tmp, "m", ld_m, 5); s.extend(flat(tmp)); stamp(s)
        if i + 4 < 19: f += A2[i + 4]
        if i in late: f += list(late[i])
        if i == 16: s.wait(vm=last(A2[i]), ds=0)
        else: s.wait(vm=last(A2[i]))
        s.extend(flat(merge(p2_mfma(i), f)))
    for b in range(4):
        for n in range(4):
            s(f"ds_write_b128 v{vrw+n}, {vr(acc2+16*b+4*n,4)} offset:{16384*b}")
    s.wait(ds=0)
    s.barrier()
    kk = {}
    for i in range(4):
        for w_ in range(4):
            kk[i, w_] = s(f"ds_read_b128 {vr(ring+16*i+4*w_,4)}, v{vrr+i} offset:{4096*w_}")
    for i in range(4):
        r_ = ring + 16 * i; b_ = base + 4 * i
        s.wait(ds=kk[i, 3])
        for k in (0, 2):
            s(f"""v_pk_add_f32 {vr(r_+k,2)}, {vr(r_+k,2)}, {vr(r_+4+k,2)}
            v_pk_add_f32 {vr(r_+8+k,2)}, {vr(r_+8+k,2)}, {vr(r_+12+k,2)}
            v_pk_add_f32 {vr(b_+k,2)}, {vr(b_+k,2)}, {vr(r_+k,2)}
            v_pk_add_f32 {vr(b_+k,2)}, {vr(b_+k,2)}, {vr(r_+8+k,2)}""")
        s(f"s_mov_b32 s81, {ROFF[i]*2048}")
        s(f"buffer_store_dwordx4 {vr(b_,4)}, v{vxo}, s[68:71], s81 offen")
    s(f"""s_cmp_lg_u32 s2, 255
    s_cbranch_scc1 L_fin
    s_cmp_lg_u32 s3, 0
    s_cbranch_scc1 L_fin
    s_mov_b64 exec, 1
    v_mov_b32 v{t0}, 0
    buffer_store_dword v{vtag}, v{t0}, s[64:67], 0 offen sc1""")
    s.label("L_fin")
    if stamps:
        s.wait(vm=0)
        stamp(s)
        s.wait(ds=0)
        s(f"""s_lshl_b32 s81, s2, 2
        s_add_u32 s81, s81, s3
        s_lshl_b32 s81, s81, 6
        s_add_u32 s81, s81, {WS_TS}
        v_mov_b32 v{t0}, s81
        s_mov_b64 exec, 1""")
        for i, r_ in enumerate([94] + STREG):
            s(f"v_mov_b32 v{t1}, s{r_}\nglobal_store_dword v{t0}, v{t1}, s[36:37] offset:{4*i}")
    s.label("L_end")
    s("s_endpgm")
    s.extend(slow)
    rep = []
    lines, added = finalize(s, rep)
    K = NAME + "_kernel"
    hdr = open("cdna_kernels/" + NAME + ".s.ref").read().split("; Override launch")[0]
    txt = hdr + "; @launch grid=(256,1,1) block=(256,1,1) lds=163840\n" + '.amdgcn_target "amdgcn-amd-amdhsa--gfx950"\n'
    txt += kernel_open(K) + "\n".join(("" if l.endswith(":") else "    ") + l for l in lines) + "\nL_code_end:\n"
    if P["touch"]: txt += f".set CODE_LIM, L_code_end - L_pc - 128\n"
    txt += kernel_desc(K)
    return txt, dict(nops=added, rep=rep, vpeak=V.peak, n=len(lines))

if __name__ == "__main__":
    txt, info = gen(stamps=False)
    open("k.s", "w").write(txt)
    print(info["nops"], info["vpeak"], info["n"])
    for r in info["rep"]: print(r)
    txt, info = gen(stamps=True)
    open("k_ts.s", "w").write(txt)
```

```python
import sys
from strm import *
from asmlib import NAME, kernel_open, kernel_desc

WS_STAT = 0x1000
WS_CAR  = 0x8000
WS_FLs  = 0x30000
WS_FLm  = 0x31000
WS_Hm   = 0x100000
WS_Hs   = 0x800000
WS_TS   = 0x1000000
WS_REC  = 0x1000000
OOB     = 0x40000000
KB = 1024
def XSLOT(k): return 16 * KB * (k & 3)
def BSLOT(k): return 64 * KB + 8 * KB * (k & 3)
def W1SLOT(k): return (96 * KB + 12 * KB * k) if k < 5 else 12 * KB * (k - 5)
RING = {c: (48 + 16 * i) * KB for i, c in enumerate("ABCDEF")}
C_SL = "ABCABCAB"
W2_SL = "DCABEFDCBEF"
S0 = 156 * KB
S0_RSTD = S0; S0_PK = S0 + 512; S0_BCS = S0 + 1024; S0_WT = S0 + 2048
S1 = 36 * KB
S1_T = S1; S1_CP = S1 + 8 * KB
S2_WCS = 144 * KB
LOG2E = 0x3fb8aa3b

def gen(stamps=False, P=None):
    P = dict(dict(gath=3, touch=True), **(P or {}))
    V = Alloc(256, 1)
    pro = S()
    nst = [0]
    STREG = [20, 22, 24, 26, 28, 30, 32, 34, 96, 98, 100]
    names = []
    def stamp(s, name):
        if not stamps: return
        for kind, ins in (("", "s_memrealtime"), ("c:", "s_memtime")):
            if kind + name in stamps:
                r = STREG[nst[0]]; nst[0] += 1; names.append(kind + name)
                s(f"{ins} s[{r}:{r+1}]")
    def v(name, cnt=1, align=1): return V.alloc(name, cnt, align)
    def vr(b, n): return f"v[{b}:{b+n-1}]"
    def ar(b, n): return f"a[{b}:{b+n-1}]"
    slow = S()

    s = pro
    s("s_cmp_ge_u32 s2, 256\ns_cbranch_scc1 L_end")
    s("s_load_dwordx16 s[4:19], s[0:1], 0\ns_load_dwordx16 s[20:35], s[0:1], 64\ns_load_dwordx2 s[36:37], s[0:1], 128")
    if stamps: s("s_memrealtime s[94:95]")
    t0 = v("t0"); t1 = v("t1"); t2 = v("t2"); t3 = v("t3")
    s(f"v_lshrrev_b32 v{t0}, 6, v0\nv_and_b32 v0, 63, v0")
    s(f"v_readfirstlane_b32 s3, v{t0}")
    s("""s_and_b32 s38, s2, 7
    s_lshl_b32 s38, s38, 1
    s_bfe_u32 s39, s2, 0x10003
    s_add_u32 s38, s38, s39
    s_lshr_b32 s39, s2, 4
    s_and_b32 s74, s39, 7
    s_lshr_b32 s75, s39, 3
    s_lshl_b32 s76, s38, 1
    s_add_u32 s75, s75, s76
    s_lshr_b32 s81, s3, 1
    s_add_u32 s76, s76, s81
    s_mul_i32 s77, s39, 3
    s_lshl_b32 s81, s39, 1
    s_add_u32 s81, s81, 11
    s_min_u32 s77, s77, s81
    s_lshl_b32 s78, s3, 12
    s_lshl_b32 s79, s3, 11
    s_mul_i32 s80, s3, 3072""")
    rho = v("rho"); hh = v("hh"); lam = v("lam"); l4 = v("l4"); p8 = v("p8")
    s(f"""v_and_b32 v{rho}, 31, v0
    v_lshrrev_b32 v{hh}, 5, v0
    v_lshrrev_b32 v{lam}, 3, v0
    v_lshrrev_b32 v{l4}, 4, v0
    v_and_b32 v{p8}, 7, v0""")
    vsr = v("vsr")
    s(f"""s_lshl_b32 s81, s38, 7
    s_lshl_b32 s82, s39, 3
    s_add_u32 s81, s81, s82
    s_lshl_b32 s82, s3, 1
    s_add_u32 s81, s81, s82
    v_add_u32 v{t0}, s81, v{hh}
    v_lshlrev_b32 v{t1}, 4, v{rho}
    v_lshl_add_u32 v{vsr}, v{t0}, 10, v{t1}""")
    vsst = v("vsst")
    s(f"v_lshlrev_b32 v{vsst}, 3, v{t0}\nv_add_u32 v{vsst}, {WS_STAT}, v{vsst}")
    kE = v("kE"); kO = v("kO")
    s(f"""v_xor_b32 v{kE}, v{p8}, v{l4}
    v_lshlrev_b32 v{kE}, 4, v{kE}
    v_xor_b32 v{kO}, 64, v{kE}""")
    vxd = v("vxd", 4)
    s(f"""s_lshl_b32 s81, s38, 7
    s_lshl_b32 s82, s3, 5
    s_add_u32 s81, s81, s82
    v_and_b32 v{t0}, 3, v{lam}
    v_lshl_add_u32 v{t0}, v{hh}, 4, v{t0}
    v_add_u32 v{t0}, s81, v{t0}
    v_lshlrev_b32 v{t0}, 10, v{t0}
    v_add_u32 v{vxd}, v{t0}, v{kE}
    v_add_u32 v{t1}, v{t0}, v{kO}
    v_add_u32 v{vxd+1}, {3072}, v{t1}
    v_add_u32 v{vxd+2}, {2*3072}, v{vxd}
    v_add_u32 v{vxd+3}, {3*3072}, v{t1}""")
    vbd = v("vbd", 2)
    s(f"""s_lshl_b32 s81, s39, 5
    s_and_b32 s82, s3, 1
    s_lshl_b32 s82, s82, 4
    s_add_u32 s81, s81, s82
    v_add_u32 v{t0}, s81, v{lam}
    v_lshlrev_b32 v{t0}, 10, v{t0}
    v_add_u32 v{vbd}, v{t0}, v{kE}
    v_add_u32 v{t1}, v{t0}, v{kO}
    v_add_u32 v{vbd+1}, {7168}, v{t1}""")
    vp2 = v("vp2"); vf2 = v("vf2"); vn2 = v("vn2")
    s(f"""s_lshl_b32 s81, s39, 6
    v_lshl_add_u32 v{vp2}, v{rho}, 1, s81
    s_lshl_b32 s81, s77, 6
    v_lshl_add_u32 v{vf2}, v{rho}, 1, s81
    s_lshl_b32 s81, s74, 7
    v_and_b32 v{t0}, 15, v0
    v_lshl_add_u32 v{vn2}, v{t0}, 3, s81""")
    s.wait(ds=0)
    def srd(b, p, n):
        s(f"s_mov_b32 s{b}, s{p}\ns_mov_b32 s{b+1}, s{p+1}\ns_mov_b32 s{b+2}, {n}\ns_mov_b32 s{b+3}, 0x20000")
    srd(40, 4, 0x200000)
    s("s_load_dword s72, s[36:37], 0")
    vst = v("vst", 8, 4)
    s(f"buffer_load_dwordx4 {vr(vst,4)}, v{vsr}, s[40:43], 0 offen")
    tk_st = s(f"buffer_load_dwordx4 {vr(vst+4,4)}, v{vsr}, s[40:43], 0 offen offset:512")
    vlr = v("vlr"); vli = v("vli"); vld = v("vld")
    s(f"global_load_ushort v{vlr}, v{vp2}, s[6:7]")
    s(f"global_load_ushort v{vli}, v{vp2}, s[8:9]")
    tk_lam = s(f"global_load_ushort v{vld}, v{vp2}, s[18:19]")
    if P["touch"]:
        ta = v("ta", 2, 2); tb = v("tb")
        s(f"""s_lshl_b32 s81, s2, 2
        s_add_u32 s81, s81, s3
        s_lshl_b32 s82, s81, 9
        s_mul_i32 s81, s81, 1376
        v_and_b32 v{t0}, 3, v0
        v_lshl_add_u32 v{t0}, v{t0}, 7, s82
        v_and_b32 v{t1}, 15, v0
        v_min_u32 v{t1}, 10, v{t1}
        v_lshl_add_u32 v{t1}, v{t1}, 7, s81
        v_cmp_gt_u32 vcc, 16, v0
        v_cndmask_b32 v{t0}, v{t1}, v{t0}, vcc
        s_getpc_b64 s[90:91]""")
        s.label("L_pc")
        s(f"""s_lshr_b32 s81, s2, 3
        s_lshl_b32 s81, s81, 2
        s_add_u32 s81, s81, s3
        s_lshl_b32 s81, s81, 8
        v_and_b32 v{t1}, 1, v0
        v_lshl_add_u32 v{t1}, v{t1}, 7, s81
        v_min_u32 v{t1}, CODE_LIM, v{t1}
        v_cmp_gt_u32 vcc, 48, v0
        v_cndmask_b32 v{t0}, v{t1}, v{t0}, vcc
        v_mov_b32 v{ta}, s90
        v_mov_b32 v{ta+1}, s91""")
        for lim, p in ((48, 28), (32, 24), (16, 16), (12, 14), (8, 12), (4, 10)):
            s(f"""v_cmp_gt_u32 vcc, {lim}, v0
            v_mov_b32 v{t1}, s{p}
            v_mov_b32 v{t2}, s{p+1}
            v_cndmask_b32 v{ta}, v{ta}, v{t1}, vcc
            v_cndmask_b32 v{ta+1}, v{ta+1}, v{t2}, vcc""")
        s(f"""v_add_co_u32 v{ta}, vcc, v{ta}, v{t0}
        v_addc_co_u32 v{ta+1}, vcc, 0, v{ta+1}, vcc
        global_load_dword v{tb}, {vr(ta,2)}, off""")
    s("s_cmp_lt_u32 s3, 2\ns_cselect_b32 s44, s10, s12\ns_cselect_b32 s45, s11, s13\ns_mov_b32 s46, 0x80000\ns_mov_b32 s47, 0x20000")

    def dma_xb(kc):
        g = []
        a = S(); a(f"s_add_u32 m0, s78, {XSLOT(kc)}\ns_movk_i32 s81, {128*kc}")
        a(f"buffer_load_dwordx4 v{vxd}, s[40:43], s81 offen lds"); g.append(a)
        for q in (1, 2, 3):
            a = S(); a(f"buffer_load_dwordx4 v{vxd+q}, s[40:43], s81 offen offset:{1024*q} lds"); g.append(a)
        a = S(); a(f"s_add_u32 m0, s79, {BSLOT(kc)}\ns_nop 0")
        a(f"buffer_load_dwordx4 v{vbd}, s[44:47], s81 offen lds"); g.append(a)
        a = S(); a(f"buffer_load_dwordx4 v{vbd+1}, s[44:47], s81 offen offset:1024 lds"); g.append(a)
        return g
    def flat(g):
        o = S()
        for a in g: o.extend(a) if isinstance(a, list) else o.append(a)
        return o
    XB = [dma_xb(k) for k in range(8)]
    s.extend(flat(XB[0]))
    vb1 = v("vb1", 3); vdk = v("vdk", 2, 2); vb2 = v("vb2", 2, 2)
    srd(84, 26, 2752)
    for t in range(3):
        s(f"buffer_load_ushort v{vb1+t}, v{vf2}, s[84:87], 0 offen offset:{64*t}")
    s(f"global_load_dwordx2 {vr(vdk,2)}, v{vn2}, s[20:21]")
    tk_small = s(f"global_load_dwordx2 {vr(vb2,2)}, v{vn2}, s[30:31]")
    srd(48, 24, 512 * 2752); srd(52, 14, 0x80000); srd(56, 16, 0x80000); srd(60, 28, 1376 * 1024)
    srd(64, 36, WS_REC); srd(68, 32, 0x400000)
    V.free("vp2", "vf2", "vn2", "vsr")
    if P["touch"]: V.free("ta")
    stamp(s, "ld0")

    vxr = v("vxr", 4); vbr = v("vbr", 4); vwr = v("vwr", 4)
    s(f"""v_lshrrev_b32 v{t2}, 1, v{rho}
    v_and_b32 v{t2}, 7, v{t2}
    v_lshlrev_b32 v{t3}, 7, v{rho}""")
    for st in range(4):
        s(f"""s_add_u32 s81, s3, {st}
        s_and_b32 s81, s81, 3
        s_lshl_b32 s82, s81, 1
        v_add_u32 v{t0}, s82, v{hh}
        v_xor_b32 v{t0}, v{t0}, v{t2}
        v_lshl_add_u32 v{t0}, v{t0}, 4, v{t3}
        v_add_u32 v{vxr+st}, s78, v{t0}
        v_add_u32 v{vbr+st}, {64*KB}, v{t0}
        s_mul_i32 s81, s81, 3072
        s_add_u32 s81, s81, {96*KB}
        v_mov_b32 v{vwr+st}, s81""")
    rp = v("rp"); cc = v("cc")
    s(f"""v_bfe_u32 v{rp}, v0, 2, 2
    v_and_b32 v{cc}, 3, v0
    v_lshl_add_u32 v{t0}, v{hh}, 3, v{rp}
    v_mul_u32_u24 v{t0}, 192, v{t0}
    v_and_b32 v{t1}, 1, v{l4}
    v_lshl_add_u32 v{t0}, v{t1}, 5, v{t0}
    v_lshl_add_u32 v{t0}, v{cc}, 3, v{t0}""")
    for st in range(4): s(f"v_add_u32 v{vwr+st}, v{vwr+st}, v{t0}")
    vwd = v("vwd", 3)
    s("s_mul_i32 s81, s3, 192\ns_lshl_b32 s82, s77, 6\ns_mov_b32 s88, 0x15555556\ns_movk_i32 s89, 2752")
    for i in range(3):
        s(f"""v_add_u32 v{t0}, s81, v0
        v_add_u32 v{t0}, {64*i}, v{t0}
        v_mul_hi_u32 v{t1}, v{t0}, s88
        v_mul_u32_u24 v{t2}, 12, v{t1}
        v_sub_u32 v{t2}, v{t0}, v{t2}
        v_lshlrev_b32 v{t2}, 4, v{t2}
        v_mul_lo_u32 v{t1}, v{t1}, s89
        v_add3_u32 v{vwd+i}, v{t1}, v{t2}, s82""")
        if i: s(f"v_subrev_u32 v{vwd+i}, {1024*i}, v{vwd+i}")
    vcd = v("vcd", 4); v2d = v("v2d", 4)
    s(f"""s_lshl_b32 s81, s74, 6
    v_add_u32 v{t0}, s81, v{lam}
    v_lshlrev_b32 v{t0}, 10, v{t0}
    s_lshl_b32 s81, s3, 8
    v_add_u32 v{t0}, s81, v{t0}
    v_add_u32 v{vcd}, v{t0}, v{kE}
    v_add_u32 v{t1}, v{t0}, v{kO}
    v_add_u32 v{vcd+1}, 7168, v{t1}
    v_add_u32 v{vcd+2}, {2*7168}, v{vcd}
    v_add_u32 v{vcd+3}, {3*7168}, v{t1}
    s_mul_i32 s81, s3, 352
    v_add_u32 v{t0}, s81, v{lam}
    v_lshlrev_b32 v{t0}, 10, v{t0}
    v_lshlrev_b32 v{t1}, 1, v{l4}
    v_xor_b32 v{t1}, v{p8}, v{t1}
    v_lshl_add_u32 v{t0}, v{t1}, 4, v{t0}
    s_lshl_b32 s81, s74, 7
    v_add_u32 v{v2d}, s81, v{t0}""")
    for q in (1, 2, 3): s(f"v_add_u32 v{v2d+q}, {7168*q}, v{v2d}")
    V.free("kE", "kO", "p8", "lam")
    vsel = v("vsel", 12, 4)
    for t in range(3):
        s(f"v_cmp_eq_u32 vcc, {t}, v{rho}\nv_mov_b32 v{t0}, 0x3f803f80\nv_cndmask_b32 v{vsel+4*t}, 0, v{t0}, vcc")
        for k in (1, 2, 3): s(f"v_mov_b32 v{vsel+4*t+k}, v{vsel+4*t}")

    st = S()
    xf = v("xf", 16, 2); acc = v("sacc", 2, 2); mean = v("mean", 2, 2)
    for i in range(8):
        st(f"v_lshlrev_b32 v{xf+2*i}, 16, v{vst+i}\nv_and_b32 v{xf+2*i+1}, 0xffff0000, v{vst+i}")
    st(f"v_pk_add_f32 {vr(acc,2)}, {vr(xf,2)}, {vr(xf+2,2)}")
    for i in range(2, 8): st(f"v_pk_add_f32 {vr(acc,2)}, {vr(acc,2)}, {vr(xf+2*i,2)}")
    def red32(o, r):
        o(f"v_add_f32 v{r}, v{r}, v{r+1}")
        for k in (8, 4, 2, 1): o(f"v_add_f32_dpp v{r}, v{r}, v{r} row_ror:{k} row_mask:0xf bank_mask:0xf")
        o(f"v_mov_b32 v{r+1}, v{r}\nv_permlane16_swap_b32 v{r}, v{r+1}\nv_add_f32 v{r}, v{r}, v{r+1}")
    red32(st, acc)
    st(f"v_mul_f32 v{mean}, 0x3b000000, v{acc}")
    for i in range(8): st(f"v_pk_add_f32 {vr(xf+2*i,2)}, {vr(xf+2*i,2)}, {vr(mean,2)} op_sel_hi:[1,0] neg_lo:[0,1] neg_hi:[0,1]")
    st(f"v_pk_mul_f32 {vr(acc,2)}, {vr(xf,2)}, {vr(xf,2)}")
    for i in range(1, 8): st(f"v_pk_fma_f32 {vr(acc,2)}, {vr(xf+2*i,2)}, {vr(xf+2*i,2)}, {vr(acc,2)}")
    red32(st, acc)
    st(f"""v_mul_f32 v{acc}, 0x3b000000, v{acc}
    v_cvt_pk_bf16_f32 v{acc}, v{acc}, v{acc}
    v_lshlrev_b32 v{acc}, 16, v{acc}
    v_add_f32 v{acc}, 0x3727c5ac, v{acc}
    v_cvt_pk_bf16_f32 v{acc}, v{acc}, v{acc}
    v_lshlrev_b32 v{acc}, 16, v{acc}
    v_sqrt_f32 v{acc}, v{acc}
    v_cvt_pk_bf16_f32 v{acc}, v{mean}, v{acc}""")
    s.wait(vm=tk_st)
    s.extend(merge(st, XB[1]))
    s.wait(ds=0)
    s(f"""s_add_u32 s72, s72, 1
    s_mov_b32 s73, s72
    v_mov_b32 v{acc+1}, s72
    s_mov_b32 exec_lo, 1
    s_mov_b32 exec_hi, 1
    buffer_store_dwordx2 {vr(acc,2)}, v{vsst}, s[64:67], 0 offen sc1
    s_mov_b64 exec, -1""")
    V.free("xf", "sacc", "mean", "vst", "vsst")
    pw = S()
    Lr = v("Lr"); Li = v("Li"); PA = v("PA", 2, 2); PK = v("PK", 2, 2); P16 = v("P16", 2, 2); P32 = v("P32", 2, 2)
    PG = v("PG", 2, 2); PW0 = v("PW0", 2, 2); PW1 = v("PW1", 2, 2)
    pw(f"""v_lshlrev_b32 v{vlr}, 16, v{vlr}
    v_lshlrev_b32 v{vli}, 16, v{vli}
    v_lshlrev_b32 v{vld}, 16, v{vld}
    v_mul_f32 v{vld}, {LOG2E:#x}, v{vld}
    v_exp_f32 v{vld}, v{vld}
    v_cvt_pk_bf16_f32 v{vld}, v{vld}, v{vld}
    v_lshlrev_b32 v{vld}, 16, v{vld}
    v_mul_f32 v{Lr}, v{vld}, v{vlr}
    v_mul_f32 v{Li}, v{vld}, v{vli}
    v_mul_f32 v{Lr}, {LOG2E:#x}, v{Lr}
    v_mul_f32 v{Li}, 0.15915494, v{Li}""")
    def cpow(dst, n):
        pw(f"""v_mul_f32 v{t0}, {n}, v{Lr}
        v_mul_f32 v{t1}, {n}, v{Li}
        v_exp_f32 v{t0}, v{t0}
        v_fract_f32 v{t1}, v{t1}
        v_cos_f32 v{dst}, v{t1}
        v_sin_f32 v{dst+1}, v{t1}
        v_mul_f32 v{dst}, v{t0}, v{dst}
        v_mul_f32 v{dst+1}, -v{t0}, v{dst+1}""")
    cpow(PA, "1.0")
    pw(f"""v_add_f32 v{t0}, -1.0, v{PA}
    v_mul_f32 v{t1}, v{vlr}, v{vlr}
    v_fmac_f32 v{t1}, v{vli}, v{vli}
    v_rcp_f32 v{t1}, v{t1}
    v_mul_f32 v{PK}, v{t0}, v{vlr}
    v_fma_f32 v{PK}, -v{PA+1}, v{vli}, v{PK}
    v_mul_f32 v{PK+1}, v{t0}, v{vli}
    v_fmac_f32 v{PK+1}, v{PA+1}, v{vlr}
    v_add_f32 v{t1}, v{t1}, v{t1}
    v_mul_f32 v{PK}, v{PK}, v{t1}
    v_mul_f32 v{PK+1}, v{PK+1}, v{t1}""")
    cpow(P16, "0x41800000"); cpow(P32, "0x42000000")
    pw(f"s_lshl_b32 s83, s3, 5\nv_lshl_add_u32 v{t2}, v{hh}, 4, s83\nv_cvt_f32_u32 v{t2}, v{t2}")
    cpow(PG, f"v{t2}")
    vcg = v("vcg", 2)
    pw(f"""s_lshl_b32 s83, s3, 2
    v_lshl_add_u32 v{t3}, v{hh}, 1, s83
    s_lshl_b32 s82, s39, 13
    s_add_u32 s82, s82, {WS_CAR}
    v_lshlrev_b32 v{t2}, 4, v{rho}
    v_lshl_add_u32 v{t2}, v{t3}, 9, v{t2}
    v_add_u32 v{t2}, s82, v{t2}
    v_mov_b32 v{t1}, {OOB}
    v_cmp_gt_u32 s[90:91], s38, v{t3}
    v_add_u32 v{t0}, 1, v{t3}
    v_cmp_gt_u32 s[92:93], s38, v{t0}
    v_cndmask_b32 v{vcg}, v{t1}, v{t2}, s[90:91]
    v_cndmask_b32 v{vcg+1}, v{t1}, v{t2}, s[92:93]
    v_sub_u32 v{t3}, s38, v{t0}
    v_max_i32 v{t2}, 0, v{t3}
    v_lshlrev_b32 v{t2}, 7, v{t2}
    v_cvt_f32_u32 v{t2}, v{t2}""")
    cpow(PW0, f"v{t2}")
    pw(f"v_add_u32 v{t3}, -1, v{t3}\nv_max_i32 v{t2}, 0, v{t3}\nv_lshlrev_b32 v{t2}, 7, v{t2}\nv_cvt_f32_u32 v{t2}, v{t2}")
    cpow(PW1, f"v{t2}")
    s.wait(vm=tk_lam)
    s.extend(merge(pw, XB[2]))
    V.free("Lr", "Li", "vlr", "vli", "vld")
    stamp(s, "pro")

    accr = v("accr", 16, 4); acci = v("acci", 16, 4); duty = v("duty", 16, 4)
    bf = v("bf", 64, 4)
    def dma_w1(kc):
        g = []
        for i in range(3):
            a = S()
            if i == 0: a(f"s_add_u32 m0, s80, {W1SLOT(kc)}\ns_mov_b32 s81, {64*2752*kc}")
            a(f"buffer_load_dwordx4 v{vwd+i}, s[48:51], s81 offen" + (f" offset:{1024*i}" if i else "") + " lds"); g.append(a)
        return g
    W1 = [dma_w1(k) for k in range(8)]
    def last(g): return g[-1][-1]
    def p1s_reads(kc):
        o = S(); b = bf + 32 * (kc & 1)
        for st_ in range(4):
            o(f"ds_read_b128 {ar(16*kc+4*st_,4)}, v{vxr+st_} offset:{XSLOT(kc)}")
            o(f"ds_read_b128 {vr(b+8*st_,4)}, v{vbr+st_} offset:{BSLOT(kc)-64*KB}")
            o(f"ds_read_b128 {vr(b+8*st_+4,4)}, v{vbr+st_} offset:{BSLOT(kc)-64*KB+4096}")
        return o
    def p1s_mfma(kc):
        o = S(); b = bf + 32 * (kc & 1)
        for st_ in range(4):
            first = kc == 0 and st_ == 0
            x = ar(16 * kc + 4 * st_, 4)
            o(f"v_mfma_f32_32x32x16_bf16 {vr(accr,16)}, {x}, {vr(b+8*st_,4)}, {'0' if first else vr(accr,16)}")
            o(f"v_mfma_f32_32x32x16_bf16 {vr(acci,16)}, {x}, {vr(b+8*st_+4,4)}, {'0' if first else vr(acci,16)}")
            if st_ == 0:
                o(f"v_mfma_f32_32x32x16_bf16 {vr(duty,16)}, {vr(vsel,4)}, {vr(b,4)}, {'0' if first else vr(duty,16)}")
                o(f"v_mfma_f32_32x32x16_bf16 {vr(duty,16)}, {vr(vsel+4,4)}, {vr(b+4,4)}, {vr(duty,16)}")
        return o
    vtr = v("vtr"); vsg = v("vsg"); sg = v("sg", 2, 2)
    s(f"""v_bfe_u32 v{t0}, v{rho}, 2, 1
    v_lshlrev_b32 v{t0}, 4, v{t0}
    v_lshrrev_b32 v{t1}, 3, v{rho}
    v_lshl_add_u32 v{t0}, v{t1}, 2, v{t0}
    v_and_b32 v{t1}, 3, v{rho}
    v_add_u32 v{t0}, v{t0}, v{t1}
    s_lshl_b32 s81, s3, 5
    v_add_u32 v{vtr}, s81, v{t0}
    s_lshl_b32 s81, s38, 10
    s_add_u32 s81, s81, {WS_STAT}
    v_lshl_add_u32 v{vsg}, v{vtr}, 3, s81
    v_lshlrev_b32 v{vtr}, 2, v{vtr}""")
    gsg = S(); tk_sg = gsg(f"buffer_load_dwordx2 {vr(sg,2)}, v{vsg}, s[64:67], 0 offen sc1")
    for kc in range(8):
        stamp(s, f"i{kc}")
        s.wait(vm=last(XB[kc]), ds=0)
        stamp(s, f"w{kc}")
        s.barrier()
        stamp(s, f"b{kc}")
        if kc <= 4: d = XB[kc + 3]
        elif kc == 5: d = W1[0] + W1[1]
        elif kc == 6: d = [gsg] + W1[2] + W1[3]
        else: d = W1[4] + W1[5]
        fill = list(p1s_reads(kc)) + d
        if kc == 0: s.extend(flat(fill))
        else: s.extend(merge(p1s_mfma(kc - 1), fill))
    s.wait(ds=0)
    xe = v("xe", 4, 4); we = v("we", 4, 4); rstd = v("rstd", 2, 2)
    sc = S()
    sc.wait(vm=tk_sg)
    chk = S(); chk(f"v_cmp_ne_u32 vcc, s72, v{sg+1}\ns_cbranch_vccnz L_slow_st"); chk.label("L_back_st")
    sc.append(chk)
    slow.label("L_slow_st")
    slow("s_mov_b32 s85, 0x8000")
    slow.label("L_slow_st2")
    slow(f"""s_nop 4
    buffer_load_dwordx2 {vr(sg,2)}, v{vsg}, s[64:67], 0 offen sc1
    s_sub_u32 s85, s85, 1
    s_cmp_eq_u32 s85, 0
    s_waitcnt vmcnt(0)
    s_cbranch_scc1 L_back_st
    v_cmp_ne_u32 vcc, s72, v{sg+1}
    s_cbranch_vccnz L_slow_st2
    s_branch L_back_st""")
    sc(f"""v_and_b32 v{t0}, 0xffff0000, v{sg}
    v_rcp_f32 v{rstd}, v{t0}
    v_add_u32 v{t2}, {S0_RSTD}, v{vtr}
    ds_write_b32 v{t2}, v{sg} offset:512
    ds_write_b32 v{t2}, v{rstd}
    v_cmp_gt_u32 vcc, 32, v0
    v_xor_b32 v{t1}, 0x8000, v{sg}
    v_and_b32 v{t1}, 0xffff, v{t1}
    v_lshl_or_b32 v{t1}, v{t1}, 16, v{t1}
    v_lshrrev_b32 v{t0}, 16, v{sg}
    v_cndmask_b32 v{xe}, 0, v{t1}, vcc
    v_cndmask_b32 v{xe+1}, 0, v{t0}, vcc
    v_mov_b32 v{xe+2}, 0
    v_mov_b32 v{xe+3}, 0
    v_mov_b32 v{we+1}, 0
    v_mov_b32 v{we+2}, 0
    v_mov_b32 v{we+3}, 0""")
    s.extend(merge(p1s_mfma(7), W1[6] + W1[7] + list(sc)))
    V.free("vxr", "vbr", "vxd", "vbd", "vwd", "bf", "sg", "vsg", "vtr")
    if P["touch"]: V.free("tb")
    stamp(s, "p1s")
    vcs = v("vcs")
    s(f"""s_lshl_b32 s81, s3, 2
    v_lshl_add_u32 v{vcs}, v{rho}, 4, s81
    v_add_u32 v{t2}, {S0_BCS}, v{vcs}
    s_mov_b32 exec_hi, 0
    ds_write_b32 v{t2}, v{duty}
    ds_write_b32 v{t2}, v{duty+1} offset:512
    s_mov_b64 exec, -1""")

    def dma_c(su):
        u = su >> 1; comp = u & 1; pi = u >> 1; dh = su & 1
        g = []
        for q in range(4):
            a = S()
            if q == 0: a(f"s_add_u32 m0, s78, {RING[C_SL[su]]}\ns_mov_b32 s81, {32768*dh+128*pi}")
            a(f"buffer_load_dwordx4 v{vcd+q}, s[{52+4*comp}:{55+4*comp}], s81 offen" + (f" offset:{1024*q}" if q else "") + " lds"); g.append(a)
        return g
    def dma_w2(f):
        g = []
        for q in range(4):
            a = S()
            if q == 0: a(f"s_add_u32 m0, s78, {RING[W2_SL[f]]}\ns_mov_b32 s81, {32768*f}")
            a(f"buffer_load_dwordx4 v{v2d+q}, s[60:63], s81 offen" + (f" offset:{1024*q}" if q else "") + " lds"); g.append(a)
        return g
    CD = [dma_c(k) for k in range(8)]; WD = [dma_w2(k) for k in range(11)]
    vcr = v("vcr", 2); v2r = v("v2r", 8)
    s(f"""v_and_b32 v{t0}, 15, v0
    v_lshrrev_b32 v{t1}, 1, v{t0}
    v_xor_b32 v{t1}, v{t1}, v{l4}
    v_lshlrev_b32 v{t0}, 7, v{t0}
    s_add_u32 s81, s78, {48*KB}
    v_add_u32 v{t0}, s81, v{t0}
    v_lshl_add_u32 v{vcr}, v{t1}, 4, v{t0}
    v_xor_b32 v{vcr+1}, 64, v{vcr}
    v_and_b32 v{t0}, 1, v{l4}
    v_lshrrev_b32 v{t1}, 1, v{rp}
    v_lshl_add_u32 v{t1}, v{t0}, 1, v{t1}
    v_lshl_add_u32 v{t0}, v{t0}, 2, v{rp}
    v_lshl_add_u32 v{t0}, v{hh}, 4, v{t0}
    v_lshlrev_b32 v{t0}, 7, v{t0}
    v_lshl_add_u32 v{t0}, v{cc}, 3, v{t0}
    v_add_u32 v{t0}, s81, v{t0}""")
    for n in range(4):
        s(f"""v_xor_b32 v{t2}, {n}, v{t1}
        v_lshl_add_u32 v{v2r+n}, v{t2}, 5, v{t0}
        v_add_u32 v{v2r+4+n}, {64*KB}, v{v2r+n}""")
    def rd_c(su):
        u = su >> 1; comp = u & 1; pi = u >> 1; dh = su & 1
        o = S(); o.wait(vm=last(CD[su]))
        for sp in range(2):
            stp = 2 * (2 * pi + sp) + comp
            for b in range(2):
                o(f"ds_read_b128 {ar(128+16*stp+4*(2*dh+b),4)}, v{vcr+sp} offset:{RING[C_SL[su]]-48*KB+2048*b}")
        return o
    def rd_w2(f, wait=True):
        o = S()
        if wait: o.wait(vm=last(WD[f]))
        base = RING[W2_SL[f]] - 48 * KB; setb = 0
        if base >= 64 * KB: base -= 64 * KB; setb = 4
        d = 16 * f if f < 8 else 128 + 16 * (f - 8)
        for n in range(4):
            o(f"ds_read_b64_tr_b16 {ar(d+4*n,2)}, v{v2r+setb+n} offset:{base}")
            o(f"ds_read_b64_tr_b16 {ar(d+4*n+2,2)}, v{v2r+setb+n} offset:{base+1024}")
        return o
    accm = v("accm", 48, 4); wf = v("wf", 36, 4)
    def p1m_reads(n):
        kc, st_ = divmod(n, 4); b = wf + 12 * (n % 3)
        base = W1SLOT(kc) - (96 * KB if kc < 5 else 0)
        o = S()
        if n == 20:
            for k in range(4): o(f"v_subrev_u32 v{vwr+k}, {96*KB}, v{vwr+k}")
        for t in range(3):
            o(f"ds_read_b64_tr_b16 {vr(b+4*t,2)}, v{vwr+st_} offset:{base+64*t}")
            o(f"ds_read_b64_tr_b16 {vr(b+4*t+2,2)}, v{vwr+st_} offset:{base+64*t+768}")
        return o
    def p1m_mfma(n):
        kc, st_ = divmod(n, 4); b = wf + 12 * (n % 3)
        o = S(); x = ar(16 * kc + 4 * st_, 4)
        for t in range(3):
            o(f"v_mfma_f32_32x32x16_bf16 {vr(accm+16*t,16)}, {vr(b+4*t,4)}, {x}, {'0' if n == 0 else vr(accm+16*t,16)}")
            if st_ == 0:
                o(f"v_mfma_f32_32x32x16_bf16 {vr(duty,16)}, {vr(vsel+4*t,4)}, {vr(b+4*t,4)}, {'0' if (n == 0 and t == 0) else vr(duty,16)}")
        return o
    RD = [p1m_reads(n) for n in range(32)]

    UU = lambda i: (accr + i) if i % 2 == 0 else (acci + i - 1)
    rs16 = v("rs16", 16, 4); tp = v("tp", 8, 4); e = v("e", 2, 2); elo = v("elo", 2, 2); Q = v("Q", 2, 2)
    def cfma(o, dst, A, H, Uadd, tmp):
        o(f"v_pk_fma_f32 {vr(tmp,2)}, {vr(A,2)}, {vr(H,2)}, {vr(Uadd,2)} op_sel:[0,0,0] op_sel_hi:[0,1,1]")
        o(f"v_pk_fma_f32 {vr(dst,2)}, {vr(A,2)}, {vr(H,2)}, {vr(tmp,2)} op_sel:[1,1,0] op_sel_hi:[1,0,1] neg_lo:[1,0,0]")
    def cmul(o, dst, A, H, tmp):
        o(f"v_pk_mul_f32 {vr(tmp,2)}, {vr(A,2)}, {vr(H,2)} op_sel:[0,0] op_sel_hi:[0,1]")
        o(f"v_pk_fma_f32 {vr(dst,2)}, {vr(A,2)}, {vr(H,2)}, {vr(tmp,2)} op_sel:[1,1,0] op_sel_hi:[1,0,1] neg_lo:[1,0,0]")
    def split_cs(o, src4, dst):
        o(f"""v_add_f32 v{src4}, v{src4}, v{src4+1}
        v_add_f32 v{src4+2}, v{src4+2}, v{src4+3}
        v_add_f32 v{src4}, v{src4}, v{src4+2}
        v_cvt_pk_bf16_f32 v{src4+1}, v{src4}, v{src4}
        v_lshlrev_b32 v{src4+2}, 16, v{src4+1}
        v_sub_f32 v{src4}, v{src4}, v{src4+2}
        v_cvt_pk_bf16_f32 v{dst}, v{src4+2}, v{src4}""")
    A0 = S()
    A0(f"v_lshlrev_b32 v{t2}, 4, v{rho}\nv_add_u32 v{t2}, {S0_BCS}, v{t2}")
    A0(f"ds_read_b128 {vr(tp,4)}, v{t2}")
    k1 = A0(f"ds_read_b128 {vr(tp+4,4)}, v{t2} offset:512")
    A0(f"s_lshl_b32 s82, s3, 7\ns_add_u32 s82, s82, {S0_RSTD}\nv_lshl_add_u32 v{t3}, v{hh}, 6, s82")
    for i in range(4): k2 = A0(f"ds_read_b128 {vr(rs16+4*i,4)}, v{t3} offset:{16*i}")
    A0.wait(ds=k1)
    split_cs(A0, tp, we)
    A0(f"v_mfma_f32_32x32x16_bf16 {vr(accr,16)}, {vr(xe,4)}, {vr(we,4)}, {vr(accr,16)}")
    split_cs(A0, tp + 4, we)
    A0(f"v_mfma_f32_32x32x16_bf16 {vr(acci,16)}, {vr(xe,4)}, {vr(we,4)}, {vr(acci,16)}")
    B1 = S(); B1.wait(ds=k2)
    for pb in range(0, 16, 2):
        for pi_ in range(2):
            B1(f"v_pk_mul_f32 {vr(tp+2*pi_,2)}, {vr(PK,2)}, {vr(accr+pb,2)} op_sel:[0,{pi_}] op_sel_hi:[1,{pi_}]")
            B1(f"v_pk_fma_f32 {vr(tp+2*pi_,2)}, {vr(PK,2)}, {vr(acci+pb,2)}, {vr(tp+2*pi_,2)} op_sel:[1,{pi_},0] op_sel_hi:[0,{pi_},1] neg_hi:[1,0,0]")
        for pi_ in range(2):
            i = pb + pi_
            B1(f"v_pk_mul_f32 {vr(UU(i),2)}, {vr(tp+2*pi_,2)}, {vr(rs16+pb,2)} op_sel:[0,{pi_}] op_sel_hi:[1,{pi_}]")
            if i == 1: cfma(B1, e, PA, UU(0), UU(1), tp + 4)
            elif i > 1: cfma(B1, e, PA, e, UU(i), tp + 4)
    B1(f"""v_mov_b32 v{elo}, v{e}
    v_mov_b32 v{elo+1}, v{e+1}
    v_permlane32_swap_b32 v{elo}, v{e}
    v_permlane32_swap_b32 v{elo+1}, v{e+1}""")
    cfma(B1, e, P16, elo, e, tp)
    B1(f"""s_lshl_b32 s82, s3, 3
    s_add_u32 s82, s82, {S0_WT}
    v_lshl_add_u32 v{t2}, v{rho}, 5, s82""")
    kW = B1(f"ds_write_b64 v{t2}, {vr(e,2)}")
    B1.wait(ds=kW)
    C1 = S()
    C1(f"v_lshlrev_b32 v{t2}, 5, v{rho}\nv_add_u32 v{t2}, {S0_WT}, v{t2}")
    C1(f"ds_read_b128 {vr(tp,4)}, v{t2}")
    k1 = C1(f"ds_read_b128 {vr(tp+4,4)}, v{t2} offset:16")
    C1(f"""s_lshl_b32 s82, s39, 4
    s_add_u32 s82, s82, s38
    s_lshl_b32 s82, s82, 9
    s_add_u32 s82, s82, {WS_CAR}
    v_lshl_add_u32 v{t3}, v{rho}, 4, s82
    s_cmp_eq_u32 s3, 1
    s_cselect_b64 s[6:7], -1, 0
    s_cmp_eq_u32 s3, 2
    s_cselect_b64 s[8:9], -1, 0
    s_cmp_eq_u32 s3, 3
    s_cselect_b64 s[10:11], -1, 0
    s_lshl_b32 s82, s3, 3
    s_lshl_b32 s12, 0xff, s82""")
    C1.wait(ds=k1)
    C1(f"v_cndmask_b32 v{Q}, 0, v{tp}, s[6:7]\nv_cndmask_b32 v{Q+1}, 0, v{tp+1}, s[6:7]")
    cfma(C1, tp + 2, P32, tp, tp + 2, e)
    C1(f"v_cndmask_b32 v{Q}, v{Q}, v{tp+2}, s[8:9]\nv_cndmask_b32 v{Q+1}, v{Q+1}, v{tp+3}, s[8:9]")
    cfma(C1, tp + 4, P32, tp + 2, tp + 4, e)
    C1(f"v_cndmask_b32 v{Q}, v{Q}, v{tp+4}, s[10:11]\nv_cndmask_b32 v{Q+1}, v{Q+1}, v{tp+5}, s[10:11]")
    cfma(C1, tp + 6, P32, tp + 4, tp + 6, e)
    pub = S()
    pub(f"""v_mov_b32 v{tp}, v{tp+6}
    v_mov_b32 v{tp+1}, s72
    v_mov_b32 v{tp+2}, v{tp+7}
    v_mov_b32 v{tp+3}, s72
    s_mov_b32 exec_lo, s12
    s_mov_b32 exec_hi, 0
    buffer_store_dwordx4 {vr(tp,4)}, v{t3}, s[64:67], 0 offen sc1
    s_mov_b64 exec, -1""")
    C1.append(pub)
    cfma(C1, tp + 4, P16, Q, elo, e)
    C1(f"v_cmp_gt_u32 vcc, 32, v0\nv_cndmask_b32 v{Q}, v{tp+4}, v{Q}, vcc\nv_cndmask_b32 v{Q+1}, v{tp+5}, v{Q+1}, vcc")
    cg = rs16
    G0 = S()
    G0(f"buffer_load_dwordx4 {vr(cg,4)}, v{vcg}, s[64:67], 0 offen sc1")
    tk_cg = G0(f"buffer_load_dwordx4 {vr(cg+4,4)}, v{vcg+1}, s[64:67], 0 offen offset:512 sc1")
    def cg_check(o):
        o(f"""v_cmp_ne_u32 s[6:7], s72, v{cg+1}
        v_cmp_ne_u32 s[8:9], s72, v{cg+3}
        v_cmp_ne_u32 s[10:11], s72, v{cg+5}
        v_cmp_ne_u32 s[12:13], s72, v{cg+7}
        s_or_b64 s[6:7], s[6:7], s[8:9]
        s_and_b64 s[6:7], s[6:7], s[90:91]
        s_or_b64 s[10:11], s[10:11], s[12:13]
        s_and_b64 s[10:11], s[10:11], s[92:93]
        s_or_b64 s[6:7], s[6:7], s[10:11]""")
    D1 = S(); D1.wait(vm=tk_cg)
    chk = S(); cg_check(chk); chk("s_cbranch_scc1 L_slow_cg"); chk.label("L_back_cg"); D1.append(chk)
    slow.label("L_slow_cg")
    slow("s_mov_b32 s85, 0x8000")
    slow.label("L_slow_cg2")
    slow(f"""buffer_load_dwordx4 {vr(cg,4)}, v{vcg}, s[64:67], 0 offen sc1
    buffer_load_dwordx4 {vr(cg+4,4)}, v{vcg+1}, s[64:67], 0 offen offset:512 sc1
    s_sub_u32 s85, s85, 1
    s_cmp_eq_u32 s85, 0
    s_waitcnt vmcnt(0)
    s_cbranch_scc1 L_back_cg""")
    cg_check(slow)
    slow("s_cbranch_scc1 L_slow_cg2\ns_branch L_back_cg")
    D1(f"v_mov_b32 v{cg+1}, v{cg+2}\nv_mov_b32 v{cg+5}, v{cg+6}")
    cmul(D1, cg + 2, PW0, cg, tp)
    cfma(D1, cg + 2, PW1, cg + 4, cg + 2, tp)
    D1(f"""s_lshl_b32 s82, s3, 4
    s_add_u32 s82, s82, {S1_CP}
    v_lshl_add_u32 v{t2}, v{rho}, 6, s82
    v_lshl_add_u32 v{t2}, v{hh}, 3, v{t2}""")
    kP = D1(f"ds_write_b64 v{t2}, {vr(cg+2,2)}")
    D1.wait(ds=kP)
    E1 = S()
    E1(f"v_lshlrev_b32 v{t2}, 6, v{rho}\nv_add_u32 v{t2}, {S1_CP}, v{t2}")
    for i in range(4): k1 = E1(f"ds_read_b128 {vr(cg+4*i,4)}, v{t2} offset:{16*i}")
    vtw = v("vtw"); vtr2 = v("vtr2"); vhs = v("vhs")
    E1(f"""s_add_u32 s82, s79, {S1_T}
    v_lshl_add_u32 v{vtw}, v{rho}, 6, s82
    v_lshl_add_u32 v{vtw}, v{hh}, 5, v{vtw}
    v_lshl_add_u32 v{t0}, v{l4}, 3, v{rp}
    v_lshl_add_u32 v{vtr2}, v{t0}, 6, s82
    v_and_b32 v{t0}, 1, v{cc}
    v_lshl_add_u32 v{vtr2}, v{t0}, 5, v{vtr2}
    v_lshrrev_b32 v{t0}, 1, v{cc}
    v_lshl_add_u32 v{vtr2}, v{t0}, 3, v{vtr2}
    s_lshl_b32 s82, s76, 4
    s_add_u32 s82, s82, s39
    s_lshl_b32 s82, s82, 13
    s_and_b32 s83, s3, 1
    s_lshl_b32 s83, s83, 11
    s_add_u32 s82, s82, s83
    s_add_u32 s82, s82, {WS_Hs}
    v_lshl_add_u32 v{vhs}, v0, 4, s82""")
    E1.wait(ds=k1)
    for a_, b_ in ((0, 2), (4, 6), (8, 10), (12, 14), (0, 4), (8, 12), (0, 8)):
        E1(f"v_pk_add_f32 {vr(cg+a_,2)}, {vr(cg+a_,2)}, {vr(cg+b_,2)}")
    cfma(E1, e, PG, cg, Q, tp)
    pk = rs16
    for i in range(16):
        cfma(E1, UU(i), PA, e if i == 0 else UU(i - 1), UU(i), tp)
        if i & 1:
            E1(f"v_cvt_pk_bf16_f32 v{pk+i//2}, v{UU(i-1)}, v{UU(i)}")
            E1(f"v_cvt_pk_bf16_f32 v{pk+8+i//2}, v{UU(i-1)+1}, v{UU(i)+1}")
    hf = accr
    toks = []
    for comp in range(2):
        E1(f"ds_write_b128 v{vtw}, {vr(pk+8*comp,4)}\nds_write_b128 v{vtw}, {vr(pk+8*comp+4,4)} offset:16")
        for mb in range(2):
            E1(f"ds_read_b64_tr_b16 {vr(hf+8*comp+4*mb,2)}, v{vtr2} offset:{16*mb}")
            k1 = E1(f"ds_read_b64_tr_b16 {vr(hf+8*comp+4*mb+2,2)}, v{vtr2} offset:{16*mb+256}")
        toks.append(k1)
    E1("s_movk_i32 s82, 4096")
    for comp in range(2):
        E1.wait(ds=toks[comp])
        for mb in range(2):
            tk_hs = E1(f"buffer_store_dwordx4 {vr(hf+8*comp+4*mb,4)}, v{vhs}, s[64:67], {'s82' if comp else '0'} offen offset:{1024*mb} sc1")
    vfl = v("vfl"); vtag = v("vtag")
    def flag(o, base, tok):
        o.wait(vm=tok)
        a = S()
        a(f"""s_mov_b64 exec, 1
        buffer_store_dword v{vtag}, v{vfl}, s[64:67], 0 offen offset:{base} sc1
        s_mov_b64 exec, -1""")
        o.append(a)
    F1 = S()
    F1(f"""s_lshl_b32 s82, s76, 4
    s_add_u32 s82, s82, s39
    s_lshl_b32 s82, s82, 1
    s_and_b32 s83, s3, 1
    s_add_u32 s82, s82, s83
    s_lshl_b32 s82, s82, 2
    s_add_u32 s82, s82, {WS_FLs}
    v_mov_b32 v{vfl}, s82
    v_mov_b32 v{vtag}, s72""")
    flag(F1, 0, tk_hs)

    g = P["gath"]
    fills = {n: [] for n in range(-2, 33)}
    def add(n, x): fills[n].extend(x if not isinstance(x, S) else list(x))
    blocks = {}
    q = []
    def Dm(gr, at): q.append(("d", gr, at))
    def Rd(o, at): q.append(("r", o, at))
    Dm(CD[0], -2); Dm(CD[1], -2); Dm(CD[2], -1)
    for su in range(8):
        Rd(rd_c(su), 1 + su + (su + 1) // 2)
        if su + 3 < 8: Dm(CD[su + 3], 2 + su + (su + 1) // 2)
        elif su == 5: Dm(WD[0], 10)
        elif su == 6: Dm(WD[1], 11)
        elif su == 7: Dm(WD[2], 13)
    plan = [(3, 14), ("r0", 15), (4, 16), ("r1", 17), (5, 18), ("r2", 19), (6, 20), ("r3", 21), (7, 22), (8, 24), ("r4", 24), (9, 26), ("r5", 27), (10, 28), ("r6", 30)]
    for x, at in plan:
        if isinstance(x, str): Rd(rd_w2(int(x[1:])), at)
        else: Dm(WD[x], at)
    lastread = {}
    for kind, o, at in q:
        if kind == "r":
            add(at, [w_ for w_ in o])
        else:
            add(at, o)
    return_info = {}
    def reuse_wait(prev_reads):
        w_ = S(); w_.wait(ds=prev_reads[-1]); return w_
    fills = {n: [] for n in range(-2, 33)}
    owner = {}
    rdmap = {}
    for kind, o, at in q:
        if kind == "r":
            for k_, gr in list(owner.items()):
                if o[0].vm is last(gr): rdmap[k_] = o
            add(at, o)
        else:
            if o in CD: sl = C_SL[CD.index(o)]
            else: sl = W2_SL[WD.index(o)]
            if sl in owner:
                assert sl in rdmap, ("slot reused before read", sl)
                add(at, reuse_wait(rdmap.pop(sl)))
            owner[sl] = o
            add(at, o)
    add(4 * g + 0, G0)
    add(28, F1) if g <= 3 else add(31, F1)
    s.wait(vm=last(W1[0]), ds=0)
    s.barrier()
    s.extend(flat(merge(list(RD[0]) + list(A0), fills[-2])))
    s.extend(flat(merge(list(RD[1]), fills[-1])))
    for n in range(32):
        kc, st_ = divmod(n, 4)
        pre = S()
        if st_ == 2 and kc < 7:
            if kc == 0: s.extend(flat(merge(list(B1), fills[n]))); fills[n] = []; stamp(s, "pass1")
            if kc == g + 1 - 0 - 0 and True: s.extend(flat(list(D1)))
            s.wait(vm=last(W1[kc + 1]))
            s.barrier()
            if kc == 0: s.extend(flat(list(C1)))
            if kc == g + 1: s.extend(flat(merge(list(E1), fills[n]))); fills[n] = []; stamp(s, "hst")
        stamp(s, f"m{n}")
        s.wait(ds=RD[n][-1])
        f = (list(RD[n + 2]) if n + 2 < 32 else []) + fills[n]
        s.extend(flat(merge(p1m_mfma(n), f)))
    stamp(s, "p1m")
    V.free("e", "elo", "Q", "vtw", "vtr2", "vhs", "PA", "PK", "P16", "P32", "PG", "PW0", "PW1", "vcg", "wf", "vwr", "vcd", "v2d", "vcr", "vsel", "accr", "acci")
    s(f"v_add_u32 v{t2}, {S2_WCS}, v{vcs}\ns_mov_b32 exec_hi, 0")
    for t in range(3): k1 = s(f"ds_write_b32 v{t2}, v{duty+t} offset:{512*t}")
    s("s_mov_b64 exec, -1")
    s.extend(rd_w2(7))
    vxo = v("vxo"); xb = v("xb", 8, 2); pst = v("pst", 4)
    s(f"""s_lshl_b32 s82, s75, 6
    s_lshr_b32 s83, s3, 1
    s_lshl_b32 s83, s83, 5
    s_add_u32 s82, s82, s83
    s_and_b32 s83, s3, 1
    s_lshl_b32 s83, s83, 3
    s_add_u32 s82, s82, s83
    v_add_u32 v{t0}, s82, v{l4}
    v_and_b32 v{t1}, 15, v0
    s_lshl_b32 s83, s74, 7
    v_lshl_add_u32 v{t1}, v{t1}, 3, s83
    v_lshl_add_u32 v{vxo}, v{t0}, 10, v{t1}
    v_and_b32 v{t0}, 127, v{t0}
    v_lshlrev_b32 v{t0}, 2, v{t0}
    v_add_u32 v{t0}, {S0_PK}, v{t0}""")
    ROFF = (0, 16, 4, 20)
    for i in range(4):
        s(f"s_mov_b32 s81, {ROFF[i]*1024}")
        tk_xb = s(f"buffer_load_dwordx2 {vr(xb+2*i,2)}, v{vxo}, s[40:43], s81 offen")
        s(f"ds_read_b32 v{pst+i}, v{t0} offset:{4*ROFF[i]}")
    s.wait(ds=0)
    s.barrier()
    s(f"v_lshlrev_b32 v{t2}, 4, v{rho}\nv_add_u32 v{t2}, {S2_WCS}, v{t2}")
    kk = []
    for t in range(3): kk.append(s(f"ds_read_b128 {vr(rs16+4*t,4)}, v{t2} offset:{512*t}"))
    vHs = v("vHs")
    s(f"""s_mul_i32 s82, s76, 43
    s_add_u32 s82, s82, s77
    s_lshl_b32 s82, s82, 12
    s_and_b32 s83, s3, 1
    s_lshl_b32 s83, s83, 11
    s_add_u32 s82, s82, s83
    s_add_u32 s82, s82, {WS_Hm}
    v_lshrrev_b32 v{t0}, 4, v{rho}
    v_lshl_add_u32 v{vHs}, v{t0}, 10, s82
    v_lshl_add_u32 v{vHs}, v{hh}, 8, v{vHs}
    v_and_b32 v{t0}, 15, v0
    v_lshl_add_u32 v{vHs}, v{t0}, 4, v{vHs}
    s_cmp_lt_u32 s39, 11
    s_cselect_b32 s83, 8192, {OOB}
    s_movk_i32 s82, 4096""")
    for t in range(3):
        s.wait(ds=kk[t]) if t else s.wait(ds=kk[t], vm=tk_small)
        split_cs(s, rs16 + 4 * t, we)
        s(f"v_mov_b32 v{we+1}, v{vb1+t}")
        s(f"v_mfma_f32_32x32x16_bf16 {vr(accm+16*t,16)}, {vr(we,4)}, {vr(xe,4)}, {vr(accm+16*t,16)}")
    hp = v("hp", 24, 4)
    for t in range(3):
        for k in range(8):
            a_ = accm + 16 * t + 2 * k
            s(f"""v_max_f32 v{a_}, 0, v{a_}
            v_max_f32 v{a_+1}, 0, v{a_+1}
            v_pk_mul_f32 {vr(a_,2)}, {vr(a_,2)}, {vr(rstd,2)} op_sel_hi:[1,0]
            v_pk_mul_f32 {vr(a_,2)}, {vr(a_,2)}, {vr(a_,2)}
            v_cvt_pk_bf16_f32 v{hp+8*t+k}, v{a_}, v{a_+1}""")
            if k & 3 == 3:
                tk_Hs = s(f"buffer_store_dwordx4 {vr(hp+8*t+k-3,4)}, v{vHs}, s[64:67], {('0','s82','s83')[t]} offen offset:{512*(k>>2)} sc1")
    stamp(s, "Hst")
    V.free("accm", "xe", "we", "rstd", "rs16", "tp", "duty", "vb1", "vcs", "vHs", "hp")

    acc2 = v("acc2", 64, 4); NR = 6; ring = v("ring", 16 * NR, 4); base = v("base", 16, 4)
    vas = v("vas"); vam = v("vam")
    s(f"""s_lshl_b32 s82, s75, 17
    s_lshl_b32 s83, s3, 15
    s_add_u32 s82, s82, s83
    s_add_u32 s82, s82, {WS_Hs}
    v_lshl_add_u32 v{vas}, v0, 4, s82
    s_mul_i32 s82, s75, 43
    s_mul_i32 s83, s3, 11
    s_add_u32 s82, s82, s83
    s_lshl_b32 s82, s82, 12
    s_add_u32 s82, s82, {WS_Hm}
    v_lshl_add_u32 v{vam}, v0, 4, s82
    s_cmp_lt_u32 s3, 3
    s_cselect_b32 s84, 40960, {OOB}
    s_lshl_b32 s82, s75, 7
    s_lshl_b32 s83, s3, 5
    s_add_u32 s83, s83, s82
    s_add_u32 s83, s83, {WS_FLs}
    s_add_u32 s86, s36, s83
    s_addc_u32 s87, s37, 0
    s_lshl_b32 s83, s3, 5
    s_max_u32 s83, s83, 8
    s_sub_u32 s83, s83, 8
    s_add_u32 s83, s83, s82
    s_add_u32 s83, s83, {WS_FLm}
    s_add_u32 s88, s36, s83
    s_addc_u32 s89, s37, 0""")
    def poll(o, nm, ld, npairs):
        a = S()
        a.label(f"L_chk_{nm}")
        a.wait(ds=0)
        for i in range(npairs): a(f"s_cmp_eq_u64 s[{4+2*i}:{5+2*i}], s[72:73]\ns_cbranch_scc0 L_slow_{nm}")
        a.label(f"L_back_{nm}")
        o.append(a)
        slow.label(f"L_slow_{nm}")
        slow(f"""s_sub_u32 s85, s85, 1
        s_cmp_eq_u32 s85, 0
        s_cbranch_scc1 L_back_{nm}
        {ld}
        s_branch L_chk_{nm}""")
    ld_s = "s_load_dwordx8 s[4:11], s[86:87], 0 glc"; ld_m = "s_load_dwordx16 s[4:19], s[88:89], 0 glc"
    s("s_mov_b32 s85, 0x8000"); s(ld_s)
    s.wait(vm=tk_xb)
    dk = v("dk", 8, 2)
    for k in range(2):
        s(f"""v_lshlrev_b32 v{dk+2*k}, 16, v{vdk+k}
        v_and_b32 v{dk+2*k+1}, 0xffff0000, v{vdk+k}
        v_lshlrev_b32 v{dk+4+2*k}, 16, v{vb2+k}
        v_and_b32 v{dk+4+2*k+1}, 0xffff0000, v{vb2+k}""")
    u = v("u", 6, 2)
    for i in range(4):
        s(f"""v_and_b32 v{u+1}, 0xffff0000, v{pst+i}
        v_rcp_f32 v{u+1}, v{u+1}
        v_lshlrev_b32 v{u}, 16, v{pst+i}""")
        for k in range(2):
            b_ = base + 4 * i + 2 * k
            s(f"""v_lshlrev_b32 v{b_}, 16, v{xb+2*i+k}
            v_and_b32 v{b_+1}, 0xffff0000, v{xb+2*i+k}
            v_pk_add_f32 {vr(u+2,2)}, {vr(b_,2)}, {vr(u,2)} op_sel_hi:[1,0] neg_lo:[0,1] neg_hi:[0,1]
            v_cvt_pk_bf16_f32 v{u+4}, v{u+2}, v{u+3}
            v_lshlrev_b32 v{u+2}, 16, v{u+4}
            v_and_b32 v{u+3}, 0xffff0000, v{u+4}
            v_pk_mul_f32 {vr(u+2,2)}, {vr(u+2,2)}, {vr(u,2)} op_sel:[0,1] op_sel_hi:[1,1]
            v_cvt_pk_bf16_f32 v{u+4}, v{u+2}, v{u+3}
            v_lshlrev_b32 v{u+2}, 16, v{u+4}
            v_and_b32 v{u+3}, 0xffff0000, v{u+4}
            v_pk_mul_f32 {vr(u+2,2)}, {vr(u+2,2)}, {vr(dk+2*k,2)}
            v_cvt_pk_bf16_f32 v{u+4}, v{u+2}, v{u+3}
            v_lshlrev_b32 v{u+2}, 16, v{u+4}
            v_and_b32 v{u+3}, 0xffff0000, v{u+4}
            v_pk_add_f32 {vr(b_,2)}, {vr(b_,2)}, {vr(u+2,2)}
            v_pk_add_f32 {vr(b_,2)}, {vr(b_,2)}, {vr(dk+4+2*k,2)}""")
    V.free("dk", "u", "xb", "pst", "vdk", "vb2")
    def a2(i):
        g_ = []; d = ring + 16 * (i % NR)
        for b in range(4):
            a = S()
            if i < 8:
                if b == 0: a(f"s_mov_b32 s81, {4096*i}")
                so = "s81"; va = vas
            else:
                f = i - 8; va = vam
                if f == 10: so = "s84"
                else:
                    so = "s81"
                    if b == 0: a(f"s_mov_b32 s81, {4096*f}")
            a(f"buffer_load_dwordx4 {vr(d+4*b,4)}, v{va}, s[64:67], {so} offen offset:{1024*b} sc1"); g_.append(a)
        return g_
    A2 = [a2(i) for i in range(19)]
    def p2_mfma(i):
        o = S(); d = ring + 16 * (i % NR)
        if i < 8: wb = 128 + 16 * i
        else:
            f = i - 8; wb = 16 * f if f < 8 else 128 + 16 * (f - 8)
        for b in range(4):
            for n in range(4):
                c_ = acc2 + 16 * b + 4 * n
                o(f"v_mfma_f32_16x16x32_bf16 {vr(c_,4)}, {ar(wb+4*n,4)}, {vr(d+4*b,4)}, {'0' if i == 0 else vr(c_,4)}")
        return o
    tmp = S(); poll(tmp, "s", ld_s, 4); s.extend(flat(tmp))
    stamp(s, "hfl")
    s.extend(flat(A2[0] + A2[1]))
    tmp = S(); s(f"v_add_u32 v{vfl}, {WS_FLm-WS_FLs}, v{vfl}"); flag(tmp, 0, tk_Hs); s.extend(flat(tmp))
    s.extend(flat(A2[2] + A2[3]))
    s.barrier()
    vrw = v("vrw", 4); vrr = v("vrr", 4)
    ad = S()
    ad(f"v_and_b32 v{t0}, 15, v0\nv_lshlrev_b32 v{t1}, 8, v{t0}\nv_add_u32 v{t1}, s78, v{t1}")
    for n in range(4):
        ad(f"v_add_u32 v{t2}, {4*n}, v{l4}\nv_xor_b32 v{t2}, v{t2}, v{t0}\nv_lshl_add_u32 v{vrw+n}, v{t2}, 4, v{t1}")
    ad("s_lshl_b32 s82, s3, 14")
    for i in range(4):
        ad(f"v_add_u32 v{t2}, {4*i}, v{l4}\nv_xor_b32 v{t3}, v{t2}, v{t0}\nv_lshlrev_b32 v{t3}, 4, v{t3}\nv_lshl_add_u32 v{t3}, v{t2}, 8, v{t3}\nv_add_u32 v{vrr+i}, s82, v{t3}")
    ad(f"v_lshlrev_b32 v{vxo}, 1, v{vxo}")
    late = {8 + 1: rd_w2(8), 8 + 2: rd_w2(9), 8 + 3: rd_w2(10)}
    for i in range(19):
        f = []
        if i == 1: f += list(ad)
        if i == 2:
            a = S(); a("s_mov_b32 s85, 0x8000"); a(ld_m); f.append(a)
        if i == 4:
            tmp = S(); poll(tmp, "m", ld_m, 5); s.extend(flat(tmp)); stamp(s, "Hfl")
        if i + 4 < 19: f += A2[i + 4]
        if i in late: f += list(late[i])
        stamp(s, f"q{i}")
        if i == 16: s.wait(vm=last(A2[i]), ds=0)
        else: s.wait(vm=last(A2[i]))
        s.extend(flat(merge(p2_mfma(i), f)))
    stamp(s, "q19")
    for b in range(4):
        for n in range(4):
            s(f"ds_write_b128 v{vrw+n}, {vr(acc2+16*b+4*n,4)} offset:{16384*b}")
    s.wait(ds=0)
    s.barrier()
    stamp(s, "red")
    kk = {}
    for i in range(4):
        for w_ in range(4):
            kk[i, w_] = s(f"ds_read_b128 {vr(ring+16*i+4*w_,4)}, v{vrr+i} offset:{4096*w_}")
    for i in range(4):
        r_ = ring + 16 * i; b_ = base + 4 * i
        s.wait(ds=kk[i, 3])
        for k in (0, 2):
            s(f"""v_pk_add_f32 {vr(r_+k,2)}, {vr(r_+k,2)}, {vr(r_+4+k,2)}
            v_pk_add_f32 {vr(r_+8+k,2)}, {vr(r_+8+k,2)}, {vr(r_+12+k,2)}
            v_pk_add_f32 {vr(b_+k,2)}, {vr(b_+k,2)}, {vr(r_+k,2)}
            v_pk_add_f32 {vr(b_+k,2)}, {vr(b_+k,2)}, {vr(r_+8+k,2)}""")
        s(f"s_mov_b32 s81, {ROFF[i]*2048}")
        s(f"buffer_store_dwordx4 {vr(b_,4)}, v{vxo}, s[68:71], s81 offen")
    s(f"""s_cmp_lg_u32 s2, 255
    s_cbranch_scc1 L_fin
    s_cmp_lg_u32 s3, 0
    s_cbranch_scc1 L_fin
    s_mov_b64 exec, 1
    v_mov_b32 v{t0}, 0
    buffer_store_dword v{vtag}, v{t0}, s[64:67], 0 offen sc1""")
    s.label("L_fin")
    if stamps:
        stamp(s, "ost")
        s.wait(vm=0)
        stamp(s, "end")
        s.wait(ds=0)
        s(f"""s_lshl_b32 s81, s2, 2
        s_add_u32 s81, s81, s3
        s_lshl_b32 s81, s81, 6
        s_add_u32 s81, s81, {WS_TS}
        v_mov_b32 v{t0}, s81
        s_mov_b64 exec, 1""")
        if P.get("dbg"):
            s("s_load_dwordx2 s[4:5], s[0:1], 120\ns_not_b32 s6, s94")
            s.wait(ds=0)
            s(f"v_mov_b32 v{t0}, 0\nv_mov_b32 v{t1}, s6\nglobal_atomic_umax v{t0}, v{t1}, s[4:5]")
            s("s_cmp_lg_u32 s3, 0\ns_cbranch_scc1 L_end")
        for i, r_ in enumerate([94] + STREG[:nst[0]]):
            if P.get("dbg"): s(f"v_mov_b32 v{t1}, s{r_}\nglobal_atomic_umax v{t0}, v{t1}, s[4:5] offset:{4*i+4}")
            else: s(f"v_mov_b32 v{t1}, s{r_}\nglobal_store_dword v{t0}, v{t1}, s[36:37] offset:{4*i}")
    s.label("L_end")
    s("s_endpgm")
    s.extend(slow)
    rep = []
    lines, added = finalize(s, rep)
    K = NAME + "_kernel"
    hdr = open("cdna_kernels/" + NAME + ".s.ref").read().split("; Override launch")[0]
    txt = hdr + "; stamps: " + " ".join(["start"] + names) + "\n; @launch grid=(256,1,1) block=(256,1,1) lds=163840\n" + '.amdgcn_target "amdgcn-amd-amdhsa--gfx950"\n'
    txt += kernel_open(K) + "\n".join(("" if l.endswith(":") else "    ") + l for l in lines) + "\nL_code_end:\n"
    if P["touch"]: txt += f".set CODE_LIM, L_code_end - L_pc - 128\n"
    txt += kernel_desc(K)
    return txt, dict(nops=added, rep=rep, vpeak=V.peak, n=len(lines))

DEF = "ld0 pro b1 p1s pass1 hst p1m Hst hfl Hfl end".split()
if __name__ == "__main__":
    txt, info = gen(stamps=None)
    open("k.s", "w").write(txt)
    print(info["nops"], info["vpeak"], info["n"])
    open("k_ts.s", "w").write(gen(stamps=DEF)[0])
    open("k_dbg.s", "w").write(gen(stamps=DEF, P=dict(dbg=1))[0])
    for i, a in enumerate(sys.argv[1:]):
        open(f"k_ts{i}.s", "w").write(gen(stamps=a.split())[0])
```

```python
import sys
from strm import *
from asmlib import NAME, kernel_open, kernel_desc

WS_STAT = 0x1000
WS_CAR  = 0x8000
WS_FLs  = 0x30000
WS_FLm  = 0x31000
WS_Hm   = 0x100000
WS_Hs   = 0x800000
WS_TS   = 0x1000000
WS_REC  = 0x1000000
OOB     = 0x40000000
KB = 1024
def XSLOT(k): return 16 * KB * (k & 3)
def BSLOT(k): return 64 * KB + 8 * KB * (k & 3)
def W1SLOT(k): return (96 * KB + 12 * KB * k) if k < 5 else 12 * KB * (k - 5)
RING = {c: (48 + 16 * i) * KB for i, c in enumerate("ABCDEF")}
C_SL = "ABCABCAB"
W2_SL = "DCABEFDCBEF"
S0 = 156 * KB
S0_RSTD = S0; S0_PK = S0 + 512; S0_BCS = S0 + 1024; S0_WT = S0 + 2048
S1 = 36 * KB
S1_T = S1; S1_CP = S1 + 8 * KB
S2_WCS = 144 * KB
LOG2E = 0x3fb8aa3b

def gen(stamps=False, P=None):
    P = dict(dict(gath=3, touch=True), **(P or {}))
    V = Alloc(256, 1)
    pro = S()
    nst = [0]
    STREG = [20, 22, 24, 26, 28, 30, 32, 34, 96, 98, 100]
    names = []
    def stamp(s, name):
        if not stamps: return
        for kind, ins in (("", "s_memrealtime"), ("c:", "s_memtime")):
            if kind + name in stamps:
                r = STREG[nst[0]]; nst[0] += 1; names.append(kind + name)
                s(f"{ins} s[{r}:{r+1}]")
    def v(name, cnt=1, align=1): return V.alloc(name, cnt, align)
    def vr(b, n): return f"v[{b}:{b+n-1}]"
    def ar(b, n): return f"a[{b}:{b+n-1}]"
    slow = S()

    s = pro
    s("s_cmp_ge_u32 s2, 256\ns_cbranch_scc1 L_end")
    s("s_load_dwordx16 s[4:19], s[0:1], 0\ns_load_dwordx16 s[20:35], s[0:1], 64\ns_load_dwordx2 s[36:37], s[0:1], 128")
    if stamps or P.get("spin"): s("s_memrealtime s[94:95]")
    t0 = v("t0"); t1 = v("t1"); t2 = v("t2"); t3 = v("t3")
    s(f"v_lshrrev_b32 v{t0}, 6, v0\nv_and_b32 v0, 63, v0")
    s(f"v_readfirstlane_b32 s3, v{t0}")
    s("""s_and_b32 s38, s2, 7
    s_lshl_b32 s38, s38, 1
    s_bfe_u32 s39, s2, 0x10003
    s_add_u32 s38, s38, s39
    s_lshr_b32 s39, s2, 4
    s_and_b32 s74, s39, 7
    s_lshr_b32 s75, s39, 3
    s_lshl_b32 s76, s38, 1
    s_add_u32 s75, s75, s76
    s_lshr_b32 s81, s3, 1
    s_add_u32 s76, s76, s81
    s_mul_i32 s77, s39, 3
    s_lshl_b32 s81, s39, 1
    s_add_u32 s81, s81, 11
    s_min_u32 s77, s77, s81
    s_lshl_b32 s78, s3, 12
    s_lshl_b32 s79, s3, 11
    s_mul_i32 s80, s3, 3072""")
    rho = v("rho"); hh = v("hh"); lam = v("lam"); l4 = v("l4"); p8 = v("p8")
    s(f"""v_and_b32 v{rho}, 31, v0
    v_lshrrev_b32 v{hh}, 5, v0
    v_lshrrev_b32 v{lam}, 3, v0
    v_lshrrev_b32 v{l4}, 4, v0
    v_and_b32 v{p8}, 7, v0""")
    vsr = v("vsr")
    s(f"""s_lshl_b32 s81, s38, 7
    s_lshl_b32 s82, s39, 3
    s_add_u32 s81, s81, s82
    s_lshl_b32 s82, s3, 1
    s_add_u32 s81, s81, s82
    v_add_u32 v{t0}, s81, v{hh}
    v_lshlrev_b32 v{t1}, 4, v{rho}
    v_lshl_add_u32 v{vsr}, v{t0}, 10, v{t1}""")
    vsst = v("vsst")
    s(f"v_lshlrev_b32 v{vsst}, 3, v{t0}\nv_add_u32 v{vsst}, {WS_STAT}, v{vsst}")
    kE = v("kE"); kO = v("kO")
    s(f"""v_xor_b32 v{kE}, v{p8}, v{l4}
    v_lshlrev_b32 v{kE}, 4, v{kE}
    v_xor_b32 v{kO}, 64, v{kE}""")
    vxd = v("vxd", 4)
    s(f"""s_lshl_b32 s81, s38, 7
    s_lshl_b32 s82, s3, 5
    s_add_u32 s81, s81, s82
    v_and_b32 v{t0}, 3, v{lam}
    v_lshl_add_u32 v{t0}, v{hh}, 4, v{t0}
    v_add_u32 v{t0}, s81, v{t0}
    v_lshlrev_b32 v{t0}, 10, v{t0}
    v_add_u32 v{vxd}, v{t0}, v{kE}
    v_add_u32 v{t1}, v{t0}, v{kO}
    v_add_u32 v{vxd+1}, {3072}, v{t1}
    v_add_u32 v{vxd+2}, {2*3072}, v{vxd}
    v_add_u32 v{vxd+3}, {3*3072}, v{t1}""")
    vbd = v("vbd", 2)
    s(f"""s_lshl_b32 s81, s39, 5
    s_and_b32 s82, s3, 1
    s_lshl_b32 s82, s82, 4
    s_add_u32 s81, s81, s82
    v_add_u32 v{t0}, s81, v{lam}
    v_lshlrev_b32 v{t0}, 10, v{t0}
    v_add_u32 v{vbd}, v{t0}, v{kE}
    v_add_u32 v{t1}, v{t0}, v{kO}
    v_add_u32 v{vbd+1}, {7168}, v{t1}""")
    vp2 = v("vp2"); vf2 = v("vf2"); vn2 = v("vn2")
    s(f"""s_lshl_b32 s81, s39, 6
    v_lshl_add_u32 v{vp2}, v{rho}, 1, s81
    s_lshl_b32 s81, s77, 6
    v_lshl_add_u32 v{vf2}, v{rho}, 1, s81
    s_lshl_b32 s81, s74, 7
    v_and_b32 v{t0}, 15, v0
    v_lshl_add_u32 v{vn2}, v{t0}, 3, s81""")
    s.wait(ds=0)
    def srd(b, p, n):
        s(f"s_mov_b32 s{b}, s{p}\ns_mov_b32 s{b+1}, s{p+1}\ns_mov_b32 s{b+2}, {n}\ns_mov_b32 s{b+3}, 0x20000")
    srd(40, 4, 0x200000)
    s("s_load_dword s72, s[36:37], 0")
    vst = v("vst", 8, 4)
    s(f"buffer_load_dwordx4 {vr(vst,4)}, v{vsr}, s[40:43], 0 offen")
    tk_st = s(f"buffer_load_dwordx4 {vr(vst+4,4)}, v{vsr}, s[40:43], 0 offen offset:512")
    vlr = v("vlr"); vli = v("vli"); vld = v("vld")
    s(f"global_load_ushort v{vlr}, v{vp2}, s[6:7]")
    s(f"global_load_ushort v{vli}, v{vp2}, s[8:9]")
    tk_lam = s(f"global_load_ushort v{vld}, v{vp2}, s[18:19]")
    if P["touch"]:
        ta = v("ta", 2, 2); tb = v("tb")
        s(f"""s_lshl_b32 s81, s2, 2
        s_add_u32 s81, s81, s3
        s_lshl_b32 s82, s81, 9
        s_mul_i32 s81, s81, 1376
        v_and_b32 v{t0}, 3, v0
        v_lshl_add_u32 v{t0}, v{t0}, 7, s82
        v_and_b32 v{t1}, 15, v0
        v_min_u32 v{t1}, 10, v{t1}
        v_lshl_add_u32 v{t1}, v{t1}, 7, s81
        v_cmp_gt_u32 vcc, 16, v0
        v_cndmask_b32 v{t0}, v{t1}, v{t0}, vcc
        s_getpc_b64 s[90:91]""")
        s.label("L_pc")
        s(f"""s_lshr_b32 s81, s2, 3
        s_lshl_b32 s81, s81, 2
        s_add_u32 s81, s81, s3
        s_lshl_b32 s81, s81, 8
        v_and_b32 v{t1}, 1, v0
        v_lshl_add_u32 v{t1}, v{t1}, 7, s81
        v_min_u32 v{t1}, CODE_LIM, v{t1}
        v_cmp_gt_u32 vcc, 48, v0
        v_cndmask_b32 v{t0}, v{t1}, v{t0}, vcc
        v_mov_b32 v{ta}, s90
        v_mov_b32 v{ta+1}, s91""")
        for lim, p in ((48, 28), (32, 24), (16, 16), (12, 14), (8, 12), (4, 10)):
            s(f"""v_cmp_gt_u32 vcc, {lim}, v0
            v_mov_b32 v{t1}, s{p}
            v_mov_b32 v{t2}, s{p+1}
            v_cndmask_b32 v{ta}, v{ta}, v{t1}, vcc
            v_cndmask_b32 v{ta+1}, v{ta+1}, v{t2}, vcc""")
        s(f"""v_add_co_u32 v{ta}, vcc, v{ta}, v{t0}
        v_addc_co_u32 v{ta+1}, vcc, 0, v{ta+1}, vcc
        global_load_dword v{tb}, {vr(ta,2)}, off""")
    s("s_cmp_lt_u32 s3, 2\ns_cselect_b32 s44, s10, s12\ns_cselect_b32 s45, s11, s13\ns_mov_b32 s46, 0x80000\ns_mov_b32 s47, 0x20000")

    def dma_xb(kc):
        g = []
        a = S(); a(f"s_add_u32 m0, s78, {XSLOT(kc)}\ns_movk_i32 s81, {128*kc}")
        a(f"buffer_load_dwordx4 v{vxd}, s[40:43], s81 offen lds"); g.append(a)
        for q in (1, 2, 3):
            a = S(); a(f"buffer_load_dwordx4 v{vxd+q}, s[40:43], s81 offen offset:{1024*q} lds"); g.append(a)
        a = S(); a(f"s_add_u32 m0, s79, {BSLOT(kc)}\ns_nop 0")
        a(f"buffer_load_dwordx4 v{vbd}, s[44:47], s81 offen lds"); g.append(a)
        a = S(); a(f"buffer_load_dwordx4 v{vbd+1}, s[44:47], s81 offen offset:1024 lds"); g.append(a)
        return g
    def flat(g):
        o = S()
        for a in g: o.extend(a) if isinstance(a, list) else o.append(a)
        return o
    XB = [dma_xb(k) for k in range(8)]
    s.extend(flat(XB[0]))
    vb1 = v("vb1", 3); vdk = v("vdk", 2, 2); vb2 = v("vb2", 2, 2)
    srd(84, 26, 2752)
    for t in range(3):
        s(f"buffer_load_ushort v{vb1+t}, v{vf2}, s[84:87], 0 offen offset:{64*t}")
    s(f"global_load_dwordx2 {vr(vdk,2)}, v{vn2}, s[20:21]")
    tk_small = s(f"global_load_dwordx2 {vr(vb2,2)}, v{vn2}, s[30:31]")
    srd(48, 24, 512 * 2752); srd(52, 14, 0x80000); srd(56, 16, 0x80000); srd(60, 28, 1376 * 1024)
    srd(64, 36, WS_REC); srd(68, 32, 0x400000)
    V.free("vp2", "vf2", "vn2", "vsr")
    if P["touch"]: V.free("ta")
    stamp(s, "ld0")

    vxr = v("vxr", 4); vbr = v("vbr", 4); vwr = v("vwr", 4)
    s(f"""v_lshrrev_b32 v{t2}, 1, v{rho}
    v_and_b32 v{t2}, 7, v{t2}
    v_lshlrev_b32 v{t3}, 7, v{rho}""")
    for st in range(4):
        s(f"""s_add_u32 s81, s3, {st}
        s_and_b32 s81, s81, 3
        s_lshl_b32 s82, s81, 1
        v_add_u32 v{t0}, s82, v{hh}
        v_xor_b32 v{t0}, v{t0}, v{t2}
        v_lshl_add_u32 v{t0}, v{t0}, 4, v{t3}
        v_add_u32 v{vxr+st}, s78, v{t0}
        v_add_u32 v{vbr+st}, {64*KB}, v{t0}
        s_mul_i32 s81, s81, 3072
        s_add_u32 s81, s81, {96*KB}
        v_mov_b32 v{vwr+st}, s81""")
    rp = v("rp"); cc = v("cc")
    s(f"""v_bfe_u32 v{rp}, v0, 2, 2
    v_and_b32 v{cc}, 3, v0
    v_lshl_add_u32 v{t0}, v{hh}, 3, v{rp}
    v_mul_u32_u24 v{t0}, 192, v{t0}
    v_and_b32 v{t1}, 1, v{l4}
    v_lshl_add_u32 v{t0}, v{t1}, 5, v{t0}
    v_lshl_add_u32 v{t0}, v{cc}, 3, v{t0}""")
    for st in range(4): s(f"v_add_u32 v{vwr+st}, v{vwr+st}, v{t0}")
    vwd = v("vwd", 3)
    s("s_mul_i32 s81, s3, 192\ns_lshl_b32 s82, s77, 6\ns_mov_b32 s88, 0x15555556\ns_movk_i32 s89, 2752")
    for i in range(3):
        s(f"""v_add_u32 v{t0}, s81, v0
        v_add_u32 v{t0}, {64*i}, v{t0}
        v_mul_hi_u32 v{t1}, v{t0}, s88
        v_mul_u32_u24 v{t2}, 12, v{t1}
        v_sub_u32 v{t2}, v{t0}, v{t2}
        v_lshlrev_b32 v{t2}, 4, v{t2}
        v_mul_lo_u32 v{t1}, v{t1}, s89
        v_add3_u32 v{vwd+i}, v{t1}, v{t2}, s82""")
        if i: s(f"v_subrev_u32 v{vwd+i}, {1024*i}, v{vwd+i}")
    vcd = v("vcd", 4); v2d = v("v2d", 4)
    s(f"""s_lshl_b32 s81, s74, 6
    v_add_u32 v{t0}, s81, v{lam}
    v_lshlrev_b32 v{t0}, 10, v{t0}
    s_lshl_b32 s81, s3, 8
    v_add_u32 v{t0}, s81, v{t0}
    v_add_u32 v{vcd}, v{t0}, v{kE}
    v_add_u32 v{t1}, v{t0}, v{kO}
    v_add_u32 v{vcd+1}, 7168, v{t1}
    v_add_u32 v{vcd+2}, {2*7168}, v{vcd}
    v_add_u32 v{vcd+3}, {3*7168}, v{t1}
    s_mul_i32 s81, s3, 352
    v_add_u32 v{t0}, s81, v{lam}
    v_lshlrev_b32 v{t0}, 10, v{t0}
    v_lshlrev_b32 v{t1}, 1, v{l4}
    v_xor_b32 v{t1}, v{p8}, v{t1}
    v_lshl_add_u32 v{t0}, v{t1}, 4, v{t0}
    s_lshl_b32 s81, s74, 7
    v_add_u32 v{v2d}, s81, v{t0}""")
    for q in (1, 2, 3): s(f"v_add_u32 v{v2d+q}, {7168*q}, v{v2d}")
    V.free("kE", "kO", "p8", "lam")
    vsel = v("vsel", 12, 4)
    for t in range(3):
        s(f"v_cmp_eq_u32 vcc, {t}, v{rho}\nv_mov_b32 v{t0}, 0x3f803f80\nv_cndmask_b32 v{vsel+4*t}, 0, v{t0}, vcc")
        for k in (1, 2, 3): s(f"v_mov_b32 v{vsel+4*t+k}, v{vsel+4*t}")

    st = S()
    xf = v("xf", 16, 2); acc = v("sacc", 2, 2); mean = v("mean", 2, 2)
    for i in range(8):
        st(f"v_lshlrev_b32 v{xf+2*i}, 16, v{vst+i}\nv_and_b32 v{xf+2*i+1}, 0xffff0000, v{vst+i}")
    st(f"v_pk_add_f32 {vr(acc,2)}, {vr(xf,2)}, {vr(xf+2,2)}")
    for i in range(2, 8): st(f"v_pk_add_f32 {vr(acc,2)}, {vr(acc,2)}, {vr(xf+2*i,2)}")
    def red32(o, r):
        o(f"v_add_f32 v{r}, v{r}, v{r+1}")
        for k in (8, 4, 2, 1): o(f"v_add_f32_dpp v{r}, v{r}, v{r} row_ror:{k} row_mask:0xf bank_mask:0xf")
        o(f"v_mov_b32 v{r+1}, v{r}\nv_permlane16_swap_b32 v{r}, v{r+1}\nv_add_f32 v{r}, v{r}, v{r+1}")
    red32(st, acc)
    st(f"v_mul_f32 v{mean}, 0x3b000000, v{acc}")
    for i in range(8): st(f"v_pk_add_f32 {vr(xf+2*i,2)}, {vr(xf+2*i,2)}, {vr(mean,2)} op_sel_hi:[1,0] neg_lo:[0,1] neg_hi:[0,1]")
    st(f"v_pk_mul_f32 {vr(acc,2)}, {vr(xf,2)}, {vr(xf,2)}")
    for i in range(1, 8): st(f"v_pk_fma_f32 {vr(acc,2)}, {vr(xf+2*i,2)}, {vr(xf+2*i,2)}, {vr(acc,2)}")
    red32(st, acc)
    st(f"""v_mul_f32 v{acc}, 0x3b000000, v{acc}
    v_cvt_pk_bf16_f32 v{acc}, v{acc}, v{acc}
    v_lshlrev_b32 v{acc}, 16, v{acc}
    v_add_f32 v{acc}, 0x3727c5ac, v{acc}
    v_cvt_pk_bf16_f32 v{acc}, v{acc}, v{acc}
    v_lshlrev_b32 v{acc}, 16, v{acc}
    v_sqrt_f32 v{acc}, v{acc}
    v_cvt_pk_bf16_f32 v{acc}, v{mean}, v{acc}""")
    s.wait(vm=tk_st)
    s.extend(merge(st, XB[1]))
    s.wait(ds=0)
    s(f"""s_add_u32 s72, s72, 1
    s_mov_b32 s73, s72
    v_mov_b32 v{acc+1}, s72
    s_mov_b32 exec_lo, 1
    s_mov_b32 exec_hi, 1
    buffer_store_dwordx2 {vr(acc,2)}, v{vsst}, s[64:67], 0 offen sc1
    s_mov_b64 exec, -1""")
    V.free("xf", "sacc", "mean", "vst", "vsst")
    pw = S()
    Lr = v("Lr"); Li = v("Li"); PA = v("PA", 2, 2); PK = v("PK", 2, 2); P16 = v("P16", 2, 2); P32 = v("P32", 2, 2)
    PG = v("PG", 2, 2); PW0 = v("PW0", 2, 2); PW1 = v("PW1", 2, 2)
    pw(f"""v_lshlrev_b32 v{vlr}, 16, v{vlr}
    v_lshlrev_b32 v{vli}, 16, v{vli}
    v_lshlrev_b32 v{vld}, 16, v{vld}
    v_mul_f32 v{vld}, {LOG2E:#x}, v{vld}
    v_exp_f32 v{vld}, v{vld}
    v_cvt_pk_bf16_f32 v{vld}, v{vld}, v{vld}
    v_lshlrev_b32 v{vld}, 16, v{vld}
    v_mul_f32 v{Lr}, v{vld}, v{vlr}
    v_mul_f32 v{Li}, v{vld}, v{vli}
    v_mul_f32 v{Lr}, {LOG2E:#x}, v{Lr}
    v_mul_f32 v{Li}, 0.15915494, v{Li}""")
    def cpow(dst, n):
        pw(f"""v_mul_f32 v{t0}, {n}, v{Lr}
        v_mul_f32 v{t1}, {n}, v{Li}
        v_exp_f32 v{t0}, v{t0}
        v_fract_f32 v{t1}, v{t1}
        v_cos_f32 v{dst}, v{t1}
        v_sin_f32 v{dst+1}, v{t1}
        v_mul_f32 v{dst}, v{t0}, v{dst}
        v_mul_f32 v{dst+1}, -v{t0}, v{dst+1}""")
    cpow(PA, "1.0")
    pw(f"""v_add_f32 v{t0}, -1.0, v{PA}
    v_mul_f32 v{t1}, v{vlr}, v{vlr}
    v_fmac_f32 v{t1}, v{vli}, v{vli}
    v_rcp_f32 v{t1}, v{t1}
    v_mul_f32 v{PK}, v{t0}, v{vlr}
    v_fma_f32 v{PK}, -v{PA+1}, v{vli}, v{PK}
    v_mul_f32 v{PK+1}, v{t0}, v{vli}
    v_fmac_f32 v{PK+1}, v{PA+1}, v{vlr}
    v_add_f32 v{t1}, v{t1}, v{t1}
    v_mul_f32 v{PK}, v{PK}, v{t1}
    v_mul_f32 v{PK+1}, v{PK+1}, v{t1}""")
    cpow(P16, "0x41800000"); cpow(P32, "0x42000000")
    pw(f"s_lshl_b32 s83, s3, 5\nv_lshl_add_u32 v{t2}, v{hh}, 4, s83\nv_cvt_f32_u32 v{t2}, v{t2}")
    cpow(PG, f"v{t2}")
    vcg = v("vcg", 2)
    pw(f"""s_lshl_b32 s83, s3, 2
    v_lshl_add_u32 v{t3}, v{hh}, 1, s83
    s_lshl_b32 s82, s39, 13
    s_add_u32 s82, s82, {WS_CAR}
    v_lshlrev_b32 v{t2}, 4, v{rho}
    v_lshl_add_u32 v{t2}, v{t3}, 9, v{t2}
    v_add_u32 v{t2}, s82, v{t2}
    v_mov_b32 v{t1}, {OOB}
    v_cmp_gt_u32 s[90:91], s38, v{t3}
    v_add_u32 v{t0}, 1, v{t3}
    v_cmp_gt_u32 s[92:93], s38, v{t0}
    v_cndmask_b32 v{vcg}, v{t1}, v{t2}, s[90:91]
    v_cndmask_b32 v{vcg+1}, v{t1}, v{t2}, s[92:93]
    v_sub_u32 v{t3}, s38, v{t0}
    v_max_i32 v{t2}, 0, v{t3}
    v_lshlrev_b32 v{t2}, 7, v{t2}
    v_cvt_f32_u32 v{t2}, v{t2}""")
    cpow(PW0, f"v{t2}")
    pw(f"v_add_u32 v{t3}, -1, v{t3}\nv_max_i32 v{t2}, 0, v{t3}\nv_lshlrev_b32 v{t2}, 7, v{t2}\nv_cvt_f32_u32 v{t2}, v{t2}")
    cpow(PW1, f"v{t2}")
    s.wait(vm=tk_lam)
    s.extend(merge(pw, XB[2]))
    V.free("Lr", "Li", "vlr", "vli", "vld")
    stamp(s, "pro")

    accr = v("accr", 16, 4); acci = v("acci", 16, 4); duty = v("duty", 16, 4)
    bf = v("bf", 64, 4)
    def dma_w1(kc):
        g = []
        for i in range(3):
            a = S()
            if i == 0: a(f"s_add_u32 m0, s80, {W1SLOT(kc)}\ns_mov_b32 s81, {64*2752*kc}")
            a(f"buffer_load_dwordx4 v{vwd+i}, s[48:51], s81 offen" + (f" offset:{1024*i}" if i else "") + " lds"); g.append(a)
        return g
    W1 = [dma_w1(k) for k in range(8)]
    def last(g): return g[-1][-1]
    def p1s_reads(kc):
        o = S(); b = bf + 32 * (kc & 1)
        for st_ in range(4):
            o(f"ds_read_b128 {ar(16*kc+4*st_,4)}, v{vxr+st_} offset:{XSLOT(kc)}")
            o(f"ds_read_b128 {vr(b+8*st_,4)}, v{vbr+st_} offset:{BSLOT(kc)-64*KB}")
            o(f"ds_read_b128 {vr(b+8*st_+4,4)}, v{vbr+st_} offset:{BSLOT(kc)-64*KB+4096}")
        return o
    def p1s_mfma(kc):
        o = S(); b = bf + 32 * (kc & 1)
        for st_ in range(4):
            first = kc == 0 and st_ == 0
            x = ar(16 * kc + 4 * st_, 4)
            o(f"v_mfma_f32_32x32x16_bf16 {vr(accr,16)}, {x}, {vr(b+8*st_,4)}, {'0' if first else vr(accr,16)}")
            o(f"v_mfma_f32_32x32x16_bf16 {vr(acci,16)}, {x}, {vr(b+8*st_+4,4)}, {'0' if first else vr(acci,16)}")
            if st_ == 0:
                o(f"v_mfma_f32_32x32x16_bf16 {vr(duty,16)}, {vr(vsel,4)}, {vr(b,4)}, {'0' if first else vr(duty,16)}")
                o(f"v_mfma_f32_32x32x16_bf16 {vr(duty,16)}, {vr(vsel+4,4)}, {vr(b+4,4)}, {vr(duty,16)}")
        return o
    vtr = v("vtr"); vsg = v("vsg"); sg = v("sg", 2, 2)
    s(f"""v_bfe_u32 v{t0}, v{rho}, 2, 1
    v_lshlrev_b32 v{t0}, 4, v{t0}
    v_lshrrev_b32 v{t1}, 3, v{rho}
    v_lshl_add_u32 v{t0}, v{t1}, 2, v{t0}
    v_and_b32 v{t1}, 3, v{rho}
    v_add_u32 v{t0}, v{t0}, v{t1}
    s_lshl_b32 s81, s3, 5
    v_add_u32 v{vtr}, s81, v{t0}
    s_lshl_b32 s81, s38, 10
    s_add_u32 s81, s81, {WS_STAT}
    v_lshl_add_u32 v{vsg}, v{vtr}, 3, s81
    v_lshlrev_b32 v{vtr}, 2, v{vtr}""")
    gsg = S(); tk_sg = gsg(f"buffer_load_dwordx2 {vr(sg,2)}, v{vsg}, s[64:67], 0 offen sc1")
    for kc in range(8):
        stamp(s, f"i{kc}")
        s.wait(vm=last(XB[kc]), ds=0)
        stamp(s, f"w{kc}")
        s.barrier()
        stamp(s, f"b{kc}")
        if kc <= 4: d = XB[kc + 3]
        elif kc == 5: d = W1[0] + W1[1]
        elif kc == 6: d = [gsg] + W1[2] + W1[3]
        else: d = W1[4] + W1[5]
        fill = list(p1s_reads(kc)) + d
        if kc == 0: s.extend(flat(fill))
        else: s.extend(merge(p1s_mfma(kc - 1), fill))
    s.wait(ds=0)
    xe = v("xe", 4, 4); we = v("we", 4, 4); rstd = v("rstd", 2, 2)
    sc = S()
    sc.wait(vm=tk_sg)
    chk = S(); chk(f"v_cmp_ne_u32 vcc, s72, v{sg+1}\ns_cbranch_vccnz L_slow_st"); chk.label("L_back_st")
    sc.append(chk)
    slow.label("L_slow_st")
    slow("s_mov_b32 s85, 0x8000")
    slow.label("L_slow_st2")
    slow(f"""s_nop 4
    buffer_load_dwordx2 {vr(sg,2)}, v{vsg}, s[64:67], 0 offen sc1
    s_sub_u32 s85, s85, 1
    s_cmp_eq_u32 s85, 0
    s_waitcnt vmcnt(0)
    s_cbranch_scc1 L_back_st
    v_cmp_ne_u32 vcc, s72, v{sg+1}
    s_cbranch_vccnz L_slow_st2
    s_branch L_back_st""")
    sc(f"""v_and_b32 v{t0}, 0xffff0000, v{sg}
    v_rcp_f32 v{rstd}, v{t0}
    v_add_u32 v{t2}, {S0_RSTD}, v{vtr}
    ds_write_b32 v{t2}, v{sg} offset:512
    ds_write_b32 v{t2}, v{rstd}
    v_cmp_gt_u32 vcc, 32, v0
    v_xor_b32 v{t1}, 0x8000, v{sg}
    v_and_b32 v{t1}, 0xffff, v{t1}
    v_lshl_or_b32 v{t1}, v{t1}, 16, v{t1}
    v_lshrrev_b32 v{t0}, 16, v{sg}
    v_cndmask_b32 v{xe}, 0, v{t1}, vcc
    v_cndmask_b32 v{xe+1}, 0, v{t0}, vcc
    v_mov_b32 v{xe+2}, 0
    v_mov_b32 v{xe+3}, 0
    v_mov_b32 v{we+1}, 0
    v_mov_b32 v{we+2}, 0
    v_mov_b32 v{we+3}, 0""")
    s.extend(merge(p1s_mfma(7), W1[6] + W1[7] + list(sc)))
    V.free("vxr", "vbr", "vxd", "vbd", "vwd", "bf", "sg", "vsg", "vtr")
    if P["touch"]: V.free("tb")
    stamp(s, "p1s")
    vcs = v("vcs")
    s(f"""s_lshl_b32 s81, s3, 2
    v_lshl_add_u32 v{vcs}, v{rho}, 4, s81
    v_add_u32 v{t2}, {S0_BCS}, v{vcs}
    s_mov_b32 exec_hi, 0
    ds_write_b32 v{t2}, v{duty}
    ds_write_b32 v{t2}, v{duty+1} offset:512
    s_mov_b64 exec, -1""")

    def dma_c(su):
        u = su >> 1; comp = u & 1; pi = u >> 1; dh = su & 1
        g = []
        for q in range(4):
            a = S()
            if q == 0: a(f"s_add_u32 m0, s78, {RING[C_SL[su]]}\ns_mov_b32 s81, {32768*dh+128*pi}")
            a(f"buffer_load_dwordx4 v{vcd+q}, s[{52+4*comp}:{55+4*comp}], s81 offen" + (f" offset:{1024*q}" if q else "") + " lds"); g.append(a)
        return g
    def dma_w2(f):
        g = []
        for q in range(4):
            a = S()
            if q == 0: a(f"s_add_u32 m0, s78, {RING[W2_SL[f]]}\ns_mov_b32 s81, {32768*f}")
            a(f"buffer_load_dwordx4 v{v2d+q}, s[60:63], s81 offen" + (f" offset:{1024*q}" if q else "") + " lds"); g.append(a)
        return g
    CD = [dma_c(k) for k in range(8)]; WD = [dma_w2(k) for k in range(11)]
    vcr = v("vcr", 2); v2r = v("v2r", 8)
    s(f"""v_and_b32 v{t0}, 15, v0
    v_lshrrev_b32 v{t1}, 1, v{t0}
    v_xor_b32 v{t1}, v{t1}, v{l4}
    v_lshlrev_b32 v{t0}, 7, v{t0}
    s_add_u32 s81, s78, {48*KB}
    v_add_u32 v{t0}, s81, v{t0}
    v_lshl_add_u32 v{vcr}, v{t1}, 4, v{t0}
    v_xor_b32 v{vcr+1}, 64, v{vcr}
    v_and_b32 v{t0}, 1, v{l4}
    v_lshrrev_b32 v{t1}, 1, v{rp}
    v_lshl_add_u32 v{t1}, v{t0}, 1, v{t1}
    v_lshl_add_u32 v{t0}, v{t0}, 2, v{rp}
    v_lshl_add_u32 v{t0}, v{hh}, 4, v{t0}
    v_lshlrev_b32 v{t0}, 7, v{t0}
    v_lshl_add_u32 v{t0}, v{cc}, 3, v{t0}
    v_add_u32 v{t0}, s81, v{t0}""")
    for n in range(4):
        s(f"""v_xor_b32 v{t2}, {n}, v{t1}
        v_lshl_add_u32 v{v2r+n}, v{t2}, 5, v{t0}
        v_add_u32 v{v2r+4+n}, {64*KB}, v{v2r+n}""")
    def rd_c(su):
        u = su >> 1; comp = u & 1; pi = u >> 1; dh = su & 1
        o = S(); o.wait(vm=last(CD[su]))
        for sp in range(2):
            stp = 2 * (2 * pi + sp) + comp
            for b in range(2):
                o(f"ds_read_b128 {ar(128+16*stp+4*(2*dh+b),4)}, v{vcr+sp} offset:{RING[C_SL[su]]-48*KB+2048*b}")
        return o
    def rd_w2(f, wait=True):
        o = S()
        if wait: o.wait(vm=last(WD[f]))
        base = RING[W2_SL[f]] - 48 * KB; setb = 0
        if base >= 64 * KB: base -= 64 * KB; setb = 4
        d = 16 * f if f < 8 else 128 + 16 * (f - 8)
        for n in range(4):
            o(f"ds_read_b64_tr_b16 {ar(d+4*n,2)}, v{v2r+setb+n} offset:{base}")
            o(f"ds_read_b64_tr_b16 {ar(d+4*n+2,2)}, v{v2r+setb+n} offset:{base+1024}")
        return o
    accm = v("accm", 48, 4); wf = v("wf", 36, 4)
    def p1m_reads(n):
        kc, st_ = divmod(n, 4); b = wf + 12 * (n % 3)
        base = W1SLOT(kc) - (96 * KB if kc < 5 else 0)
        o = S()
        if n == 20:
            for k in range(4): o(f"v_subrev_u32 v{vwr+k}, {96*KB}, v{vwr+k}")
        for t in range(3):
            o(f"ds_read_b64_tr_b16 {vr(b+4*t,2)}, v{vwr+st_} offset:{base+64*t}")
            o(f"ds_read_b64_tr_b16 {vr(b+4*t+2,2)}, v{vwr+st_} offset:{base+64*t+768}")
        return o
    def p1m_mfma(n):
        kc, st_ = divmod(n, 4); b = wf + 12 * (n % 3)
        o = S(); x = ar(16 * kc + 4 * st_, 4)
        for t in range(3):
            o(f"v_mfma_f32_32x32x16_bf16 {vr(accm+16*t,16)}, {vr(b+4*t,4)}, {x}, {'0' if n == 0 else vr(accm+16*t,16)}")
            if st_ == 0:
                o(f"v_mfma_f32_32x32x16_bf16 {vr(duty,16)}, {vr(vsel+4*t,4)}, {vr(b+4*t,4)}, {'0' if (n == 0 and t == 0) else vr(duty,16)}")
        return o
    RD = [p1m_reads(n) for n in range(32)]

    UU = lambda i: (accr + i) if i % 2 == 0 else (acci + i - 1)
    rs16 = v("rs16", 16, 4); tp = v("tp", 8, 4); e = v("e", 2, 2); elo = v("elo", 2, 2); Q = v("Q", 2, 2)
    def cfma(o, dst, A, H, Uadd, tmp):
        o(f"v_pk_fma_f32 {vr(tmp,2)}, {vr(A,2)}, {vr(H,2)}, {vr(Uadd,2)} op_sel:[0,0,0] op_sel_hi:[0,1,1]")
        o(f"v_pk_fma_f32 {vr(dst,2)}, {vr(A,2)}, {vr(H,2)}, {vr(tmp,2)} op_sel:[1,1,0] op_sel_hi:[1,0,1] neg_lo:[1,0,0]")
    def cmul(o, dst, A, H, tmp):
        o(f"v_pk_mul_f32 {vr(tmp,2)}, {vr(A,2)}, {vr(H,2)} op_sel:[0,0] op_sel_hi:[0,1]")
        o(f"v_pk_fma_f32 {vr(dst,2)}, {vr(A,2)}, {vr(H,2)}, {vr(tmp,2)} op_sel:[1,1,0] op_sel_hi:[1,0,1] neg_lo:[1,0,0]")
    def split_cs(o, src4, dst):
        o(f"""v_add_f32 v{src4}, v{src4}, v{src4+1}
        v_add_f32 v{src4+2}, v{src4+2}, v{src4+3}
        v_add_f32 v{src4}, v{src4}, v{src4+2}
        v_cvt_pk_bf16_f32 v{src4+1}, v{src4}, v{src4}
        v_lshlrev_b32 v{src4+2}, 16, v{src4+1}
        v_sub_f32 v{src4}, v{src4}, v{src4+2}
        v_cvt_pk_bf16_f32 v{dst}, v{src4+2}, v{src4}""")
    A0 = S()
    A0(f"v_lshlrev_b32 v{t2}, 4, v{rho}\nv_add_u32 v{t2}, {S0_BCS}, v{t2}")
    A0(f"ds_read_b128 {vr(tp,4)}, v{t2}")
    k1 = A0(f"ds_read_b128 {vr(tp+4,4)}, v{t2} offset:512")
    A0(f"s_lshl_b32 s82, s3, 7\ns_add_u32 s82, s82, {S0_RSTD}\nv_lshl_add_u32 v{t3}, v{hh}, 6, s82")
    for i in range(4): k2 = A0(f"ds_read_b128 {vr(rs16+4*i,4)}, v{t3} offset:{16*i}")
    A0.wait(ds=k1)
    split_cs(A0, tp, we)
    A0(f"v_mfma_f32_32x32x16_bf16 {vr(accr,16)}, {vr(xe,4)}, {vr(we,4)}, {vr(accr,16)}")
    split_cs(A0, tp + 4, we)
    A0(f"v_mfma_f32_32x32x16_bf16 {vr(acci,16)}, {vr(xe,4)}, {vr(we,4)}, {vr(acci,16)}")
    B1 = S(); B1.wait(ds=k2)
    for pb in range(0, 16, 2):
        for pi_ in range(2):
            B1(f"v_pk_mul_f32 {vr(tp+2*pi_,2)}, {vr(PK,2)}, {vr(accr+pb,2)} op_sel:[0,{pi_}] op_sel_hi:[1,{pi_}]")
            B1(f"v_pk_fma_f32 {vr(tp+2*pi_,2)}, {vr(PK,2)}, {vr(acci+pb,2)}, {vr(tp+2*pi_,2)} op_sel:[1,{pi_},0] op_sel_hi:[0,{pi_},1] neg_hi:[1,0,0]")
        for pi_ in range(2):
            i = pb + pi_
            B1(f"v_pk_mul_f32 {vr(UU(i),2)}, {vr(tp+2*pi_,2)}, {vr(rs16+pb,2)} op_sel:[0,{pi_}] op_sel_hi:[1,{pi_}]")
            if i == 1: cfma(B1, e, PA, UU(0), UU(1), tp + 4)
            elif i > 1: cfma(B1, e, PA, e, UU(i), tp + 4)
    B1(f"""v_mov_b32 v{elo}, v{e}
    v_mov_b32 v{elo+1}, v{e+1}
    v_permlane32_swap_b32 v{elo}, v{e}
    v_permlane32_swap_b32 v{elo+1}, v{e+1}""")
    cfma(B1, e, P16, elo, e, tp)
    B1(f"""s_lshl_b32 s82, s3, 3
    s_add_u32 s82, s82, {S0_WT}
    v_lshl_add_u32 v{t2}, v{rho}, 5, s82""")
    kW = B1(f"ds_write_b64 v{t2}, {vr(e,2)}")
    B1.wait(ds=kW)
    C1 = S()
    C1(f"v_lshlrev_b32 v{t2}, 5, v{rho}\nv_add_u32 v{t2}, {S0_WT}, v{t2}")
    C1(f"ds_read_b128 {vr(tp,4)}, v{t2}")
    k1 = C1(f"ds_read_b128 {vr(tp+4,4)}, v{t2} offset:16")
    C1(f"""s_lshl_b32 s82, s39, 4
    s_add_u32 s82, s82, s38
    s_lshl_b32 s82, s82, 9
    s_add_u32 s82, s82, {WS_CAR}
    v_lshl_add_u32 v{t3}, v{rho}, 4, s82
    s_cmp_eq_u32 s3, 1
    s_cselect_b64 s[6:7], -1, 0
    s_cmp_eq_u32 s3, 2
    s_cselect_b64 s[8:9], -1, 0
    s_cmp_eq_u32 s3, 3
    s_cselect_b64 s[10:11], -1, 0
    s_lshl_b32 s82, s3, 3
    s_lshl_b32 s12, 0xff, s82""")
    C1.wait(ds=k1)
    C1(f"v_cndmask_b32 v{Q}, 0, v{tp}, s[6:7]\nv_cndmask_b32 v{Q+1}, 0, v{tp+1}, s[6:7]")
    cfma(C1, tp + 2, P32, tp, tp + 2, e)
    C1(f"v_cndmask_b32 v{Q}, v{Q}, v{tp+2}, s[8:9]\nv_cndmask_b32 v{Q+1}, v{Q+1}, v{tp+3}, s[8:9]")
    cfma(C1, tp + 4, P32, tp + 2, tp + 4, e)
    C1(f"v_cndmask_b32 v{Q}, v{Q}, v{tp+4}, s[10:11]\nv_cndmask_b32 v{Q+1}, v{Q+1}, v{tp+5}, s[10:11]")
    cfma(C1, tp + 6, P32, tp + 4, tp + 6, e)
    pub = S()
    pub(f"""v_mov_b32 v{tp}, v{tp+6}
    v_mov_b32 v{tp+1}, s72
    v_mov_b32 v{tp+2}, v{tp+7}
    v_mov_b32 v{tp+3}, s72
    s_mov_b32 exec_lo, s12
    s_mov_b32 exec_hi, 0
    buffer_store_dwordx4 {vr(tp,4)}, v{t3}, s[64:67], 0 offen sc1
    s_mov_b64 exec, -1""")
    C1.append(pub)
    cfma(C1, tp + 4, P16, Q, elo, e)
    C1(f"v_cmp_gt_u32 vcc, 32, v0\nv_cndmask_b32 v{Q}, v{tp+4}, v{Q}, vcc\nv_cndmask_b32 v{Q+1}, v{tp+5}, v{Q+1}, vcc")
    cg = rs16
    G0 = S()
    G0(f"buffer_load_dwordx4 {vr(cg,4)}, v{vcg}, s[64:67], 0 offen sc1")
    tk_cg = G0(f"buffer_load_dwordx4 {vr(cg+4,4)}, v{vcg+1}, s[64:67], 0 offen offset:512 sc1")
    def cg_check(o):
        o(f"""v_cmp_ne_u32 s[6:7], s72, v{cg+1}
        v_cmp_ne_u32 s[8:9], s72, v{cg+3}
        v_cmp_ne_u32 s[10:11], s72, v{cg+5}
        v_cmp_ne_u32 s[12:13], s72, v{cg+7}
        s_or_b64 s[6:7], s[6:7], s[8:9]
        s_and_b64 s[6:7], s[6:7], s[90:91]
        s_or_b64 s[10:11], s[10:11], s[12:13]
        s_and_b64 s[10:11], s[10:11], s[92:93]
        s_or_b64 s[6:7], s[6:7], s[10:11]""")
    D1 = S(); D1.wait(vm=tk_cg)
    chk = S(); cg_check(chk); chk("s_cbranch_scc1 L_slow_cg"); chk.label("L_back_cg"); D1.append(chk)
    slow.label("L_slow_cg")
    slow("s_mov_b32 s85, 0x8000")
    slow.label("L_slow_cg2")
    slow(f"""buffer_load_dwordx4 {vr(cg,4)}, v{vcg}, s[64:67], 0 offen sc1
    buffer_load_dwordx4 {vr(cg+4,4)}, v{vcg+1}, s[64:67], 0 offen offset:512 sc1
    s_sub_u32 s85, s85, 1
    s_cmp_eq_u32 s85, 0
    s_waitcnt vmcnt(0)
    s_cbranch_scc1 L_back_cg""")
    cg_check(slow)
    slow("s_cbranch_scc1 L_slow_cg2\ns_branch L_back_cg")
    D1(f"v_mov_b32 v{cg+1}, v{cg+2}\nv_mov_b32 v{cg+5}, v{cg+6}")
    cmul(D1, cg + 2, PW0, cg, tp)
    cfma(D1, cg + 2, PW1, cg + 4, cg + 2, tp)
    D1(f"""s_lshl_b32 s82, s3, 4
    s_add_u32 s82, s82, {S1_CP}
    v_lshl_add_u32 v{t2}, v{rho}, 6, s82
    v_lshl_add_u32 v{t2}, v{hh}, 3, v{t2}""")
    kP = D1(f"ds_write_b64 v{t2}, {vr(cg+2,2)}")
    D1.wait(ds=kP)
    E1 = S()
    E1(f"v_lshlrev_b32 v{t2}, 6, v{rho}\nv_add_u32 v{t2}, {S1_CP}, v{t2}")
    for i in range(4): k1 = E1(f"ds_read_b128 {vr(cg+4*i,4)}, v{t2} offset:{16*i}")
    vtw = v("vtw"); vtr2 = v("vtr2"); vhs = v("vhs")
    E1(f"""s_add_u32 s82, s79, {S1_T}
    v_lshl_add_u32 v{vtw}, v{rho}, 6, s82
    v_lshl_add_u32 v{vtw}, v{hh}, 5, v{vtw}
    v_lshl_add_u32 v{t0}, v{l4}, 3, v{rp}
    v_lshl_add_u32 v{vtr2}, v{t0}, 6, s82
    v_and_b32 v{t0}, 1, v{cc}
    v_lshl_add_u32 v{vtr2}, v{t0}, 5, v{vtr2}
    v_lshrrev_b32 v{t0}, 1, v{cc}
    v_lshl_add_u32 v{vtr2}, v{t0}, 3, v{vtr2}
    s_lshl_b32 s82, s76, 4
    s_add_u32 s82, s82, s39
    s_lshl_b32 s82, s82, 13
    s_and_b32 s83, s3, 1
    s_lshl_b32 s83, s83, 11
    s_add_u32 s82, s82, s83
    s_add_u32 s82, s82, {WS_Hs}
    v_lshl_add_u32 v{vhs}, v0, 4, s82""")
    E1.wait(ds=k1)
    for a_, b_ in ((0, 2), (4, 6), (8, 10), (12, 14), (0, 4), (8, 12), (0, 8)):
        E1(f"v_pk_add_f32 {vr(cg+a_,2)}, {vr(cg+a_,2)}, {vr(cg+b_,2)}")
    cfma(E1, e, PG, cg, Q, tp)
    pk = rs16
    for i in range(16):
        cfma(E1, UU(i), PA, e if i == 0 else UU(i - 1), UU(i), tp)
        if i & 1:
            E1(f"v_cvt_pk_bf16_f32 v{pk+i//2}, v{UU(i-1)}, v{UU(i)}")
            E1(f"v_cvt_pk_bf16_f32 v{pk+8+i//2}, v{UU(i-1)+1}, v{UU(i)+1}")
    hf = accr
    toks = []
    for comp in range(2):
        E1(f"ds_write_b128 v{vtw}, {vr(pk+8*comp,4)}\nds_write_b128 v{vtw}, {vr(pk+8*comp+4,4)} offset:16")
        for mb in range(2):
            E1(f"ds_read_b64_tr_b16 {vr(hf+8*comp+4*mb,2)}, v{vtr2} offset:{16*mb}")
            k1 = E1(f"ds_read_b64_tr_b16 {vr(hf+8*comp+4*mb+2,2)}, v{vtr2} offset:{16*mb+256}")
        toks.append(k1)
    E1("s_movk_i32 s82, 4096")
    for comp in range(2):
        E1.wait(ds=toks[comp])
        for mb in range(2):
            tk_hs = E1(f"buffer_store_dwordx4 {vr(hf+8*comp+4*mb,4)}, v{vhs}, s[64:67], {'s82' if comp else '0'} offen offset:{1024*mb} sc1")
    vfl = v("vfl"); vtag = v("vtag")
    def flag(o, base, tok):
        o.wait(vm=tok)
        a = S()
        a(f"""s_mov_b64 exec, 1
        buffer_store_dword v{vtag}, v{vfl}, s[64:67], 0 offen offset:{base} sc1
        s_mov_b64 exec, -1""")
        o.append(a)
    F1 = S()
    F1(f"""s_lshl_b32 s82, s76, 4
    s_add_u32 s82, s82, s39
    s_lshl_b32 s82, s82, 1
    s_and_b32 s83, s3, 1
    s_add_u32 s82, s82, s83
    s_lshl_b32 s82, s82, 2
    s_add_u32 s82, s82, {WS_FLs}
    v_mov_b32 v{vfl}, s82
    v_mov_b32 v{vtag}, s72""")
    flag(F1, 0, tk_hs)

    g = P["gath"]
    fills = {n: [] for n in range(-2, 33)}
    def add(n, x): fills[n].extend(x if not isinstance(x, S) else list(x))
    blocks = {}
    q = []
    def Dm(gr, at): q.append(("d", gr, at))
    def Rd(o, at): q.append(("r", o, at))
    Dm(CD[0], -2); Dm(CD[1], -2); Dm(CD[2], -1)
    for su in range(8):
        Rd(rd_c(su), 1 + su + (su + 1) // 2)
        if su + 3 < 8: Dm(CD[su + 3], 2 + su + (su + 1) // 2)
        elif su == 5: Dm(WD[0], 10)
        elif su == 6: Dm(WD[1], 11)
        elif su == 7: Dm(WD[2], 13)
    plan = [(3, 14), ("r0", 15), (4, 16), ("r1", 17), (5, 18), ("r2", 19), (6, 20), ("r3", 21), (7, 22), (8, 24), ("r4", 24), (9, 26), ("r5", 27), (10, 28), ("r6", 30)]
    for x, at in plan:
        if isinstance(x, str): Rd(rd_w2(int(x[1:])), at)
        else: Dm(WD[x], at)
    lastread = {}
    for kind, o, at in q:
        if kind == "r":
            add(at, [w_ for w_ in o])
        else:
            add(at, o)
    return_info = {}
    def reuse_wait(prev_reads):
        w_ = S(); w_.wait(ds=prev_reads[-1]); return w_
    fills = {n: [] for n in range(-2, 33)}
    owner = {}
    rdmap = {}
    for kind, o, at in q:
        if kind == "r":
            for k_, gr in list(owner.items()):
                if o[0].vm is last(gr): rdmap[k_] = o
            add(at, o)
        else:
            if o in CD: sl = C_SL[CD.index(o)]
            else: sl = W2_SL[WD.index(o)]
            if sl in owner:
                assert sl in rdmap, ("slot reused before read", sl)
                add(at, reuse_wait(rdmap.pop(sl)))
            owner[sl] = o
            add(at, o)
    add(4 * g + 0, G0)
    add(28, F1) if g <= 3 else add(31, F1)
    s.wait(vm=last(W1[0]), ds=0)
    s.barrier()
    s.extend(flat(merge(list(RD[0]) + list(A0), fills[-2])))
    s.extend(flat(merge(list(RD[1]), fills[-1])))
    for n in range(32):
        kc, st_ = divmod(n, 4)
        pre = S()
        if st_ == 2 and kc < 7:
            if kc == 0: s.extend(flat(merge(list(B1), fills[n]))); fills[n] = []; stamp(s, "pass1")
            if kc == g + 1 - 0 - 0 and True: s.extend(flat(list(D1)))
            s.wait(vm=last(W1[kc + 1]))
            s.barrier()
            if kc == 0: s.extend(flat(list(C1)))
            if kc == g + 1: s.extend(flat(merge(list(E1), fills[n]))); fills[n] = []; stamp(s, "hst")
        stamp(s, f"m{n}")
        s.wait(ds=RD[n][-1])
        f = (list(RD[n + 2]) if n + 2 < 32 else []) + fills[n]
        s.extend(flat(merge(p1m_mfma(n), f)))
    stamp(s, "p1m")
    V.free("e", "elo", "Q", "vtw", "vtr2", "vhs", "PA", "PK", "P16", "P32", "PG", "PW0", "PW1", "vcg", "wf", "vwr", "vcd", "v2d", "vcr", "vsel", "accr", "acci")
    s(f"v_add_u32 v{t2}, {S2_WCS}, v{vcs}\ns_mov_b32 exec_hi, 0")
    for t in range(3): k1 = s(f"ds_write_b32 v{t2}, v{duty+t} offset:{512*t}")
    s("s_mov_b64 exec, -1")
    s.extend(rd_w2(7))
    vxo = v("vxo"); xb = v("xb", 8, 2); pst = v("pst", 4)
    s(f"""s_lshl_b32 s82, s75, 6
    s_lshr_b32 s83, s3, 1
    s_lshl_b32 s83, s83, 5
    s_add_u32 s82, s82, s83
    s_and_b32 s83, s3, 1
    s_lshl_b32 s83, s83, 3
    s_add_u32 s82, s82, s83
    v_add_u32 v{t0}, s82, v{l4}
    v_and_b32 v{t1}, 15, v0
    s_lshl_b32 s83, s74, 7
    v_lshl_add_u32 v{t1}, v{t1}, 3, s83
    v_lshl_add_u32 v{vxo}, v{t0}, 10, v{t1}
    v_and_b32 v{t0}, 127, v{t0}
    v_lshlrev_b32 v{t0}, 2, v{t0}
    v_add_u32 v{t0}, {S0_PK}, v{t0}""")
    ROFF = (0, 16, 4, 20)
    for i in range(4):
        s(f"s_mov_b32 s81, {ROFF[i]*1024}")
        tk_xb = s(f"buffer_load_dwordx2 {vr(xb+2*i,2)}, v{vxo}, s[40:43], s81 offen")
        s(f"ds_read_b32 v{pst+i}, v{t0} offset:{4*ROFF[i]}")
    s.wait(ds=0)
    s.barrier()
    s(f"v_lshlrev_b32 v{t2}, 4, v{rho}\nv_add_u32 v{t2}, {S2_WCS}, v{t2}")
    kk = []
    for t in range(3): kk.append(s(f"ds_read_b128 {vr(rs16+4*t,4)}, v{t2} offset:{512*t}"))
    vHs = v("vHs")
    s(f"""s_mul_i32 s82, s76, 43
    s_add_u32 s82, s82, s77
    s_lshl_b32 s82, s82, 12
    s_and_b32 s83, s3, 1
    s_lshl_b32 s83, s83, 11
    s_add_u32 s82, s82, s83
    s_add_u32 s82, s82, {WS_Hm}
    v_lshrrev_b32 v{t0}, 4, v{rho}
    v_lshl_add_u32 v{vHs}, v{t0}, 10, s82
    v_lshl_add_u32 v{vHs}, v{hh}, 8, v{vHs}
    v_and_b32 v{t0}, 15, v0
    v_lshl_add_u32 v{vHs}, v{t0}, 4, v{vHs}
    s_cmp_lt_u32 s39, 11
    s_cselect_b32 s83, 8192, {OOB}
    s_movk_i32 s82, 4096""")
    for t in range(3):
        s.wait(ds=kk[t]) if t else s.wait(ds=kk[t], vm=tk_small)
        split_cs(s, rs16 + 4 * t, we)
        s(f"v_mov_b32 v{we+1}, v{vb1+t}")
        s(f"v_mfma_f32_32x32x16_bf16 {vr(accm+16*t,16)}, {vr(we,4)}, {vr(xe,4)}, {vr(accm+16*t,16)}")
    hp = v("hp", 24, 4)
    for t in range(3):
        for k in range(8):
            a_ = accm + 16 * t + 2 * k
            s(f"""v_max_f32 v{a_}, 0, v{a_}
            v_max_f32 v{a_+1}, 0, v{a_+1}
            v_pk_mul_f32 {vr(a_,2)}, {vr(a_,2)}, {vr(rstd,2)} op_sel_hi:[1,0]
            v_pk_mul_f32 {vr(a_,2)}, {vr(a_,2)}, {vr(a_,2)}
            v_cvt_pk_bf16_f32 v{hp+8*t+k}, v{a_}, v{a_+1}""")
            if k & 3 == 3:
                tk_Hs = s(f"buffer_store_dwordx4 {vr(hp+8*t+k-3,4)}, v{vHs}, s[64:67], {('0','s82','s83')[t]} offen offset:{512*(k>>2)} sc1")
    stamp(s, "Hst")
    V.free("accm", "xe", "we", "rstd", "rs16", "tp", "duty", "vb1", "vcs", "vHs", "hp")

    acc2 = v("acc2", 64, 4); NR = 6; ring = v("ring", 16 * NR, 4); base = v("base", 16, 4)
    vas = v("vas"); vam = v("vam")
    s(f"""s_lshl_b32 s82, s75, 17
    s_lshl_b32 s83, s3, 15
    s_add_u32 s82, s82, s83
    s_add_u32 s82, s82, {WS_Hs}
    v_lshl_add_u32 v{vas}, v0, 4, s82
    s_mul_i32 s82, s75, 43
    s_mul_i32 s83, s3, 11
    s_add_u32 s82, s82, s83
    s_lshl_b32 s82, s82, 12
    s_add_u32 s82, s82, {WS_Hm}
    v_lshl_add_u32 v{vam}, v0, 4, s82
    s_cmp_lt_u32 s3, 3
    s_cselect_b32 s84, 40960, {OOB}
    s_lshl_b32 s82, s75, 7
    s_lshl_b32 s83, s3, 5
    s_add_u32 s83, s83, s82
    s_add_u32 s83, s83, {WS_FLs}
    s_add_u32 s86, s36, s83
    s_addc_u32 s87, s37, 0
    s_lshl_b32 s83, s3, 5
    s_max_u32 s83, s83, 8
    s_sub_u32 s83, s83, 8
    s_add_u32 s83, s83, s82
    s_add_u32 s83, s83, {WS_FLm}
    s_add_u32 s88, s36, s83
    s_addc_u32 s89, s37, 0""")
    def poll(o, nm, ld, npairs):
        a = S()
        a.label(f"L_chk_{nm}")
        a.wait(ds=0)
        for i in range(npairs): a(f"s_cmp_eq_u64 s[{4+2*i}:{5+2*i}], s[72:73]\ns_cbranch_scc0 L_slow_{nm}")
        a.label(f"L_back_{nm}")
        o.append(a)
        slow.label(f"L_slow_{nm}")
        slow(f"""s_sub_u32 s85, s85, 1
        s_cmp_eq_u32 s85, 0
        s_cbranch_scc1 L_back_{nm}
        {ld}
        s_branch L_chk_{nm}""")
    ld_s = "s_load_dwordx8 s[4:11], s[86:87], 0 glc"; ld_m = "s_load_dwordx16 s[4:19], s[88:89], 0 glc"
    s("s_mov_b32 s85, 0x8000"); s(ld_s)
    s.wait(vm=tk_xb)
    dk = v("dk", 8, 2)
    for k in range(2):
        s(f"""v_lshlrev_b32 v{dk+2*k}, 16, v{vdk+k}
        v_and_b32 v{dk+2*k+1}, 0xffff0000, v{vdk+k}
        v_lshlrev_b32 v{dk+4+2*k}, 16, v{vb2+k}
        v_and_b32 v{dk+4+2*k+1}, 0xffff0000, v{vb2+k}""")
    u = v("u", 6, 2)
    for i in range(4):
        s(f"""v_and_b32 v{u+1}, 0xffff0000, v{pst+i}
        v_rcp_f32 v{u+1}, v{u+1}
        v_lshlrev_b32 v{u}, 16, v{pst+i}""")
        for k in range(2):
            b_ = base + 4 * i + 2 * k
            s(f"""v_lshlrev_b32 v{b_}, 16, v{xb+2*i+k}
            v_and_b32 v{b_+1}, 0xffff0000, v{xb+2*i+k}
            v_pk_add_f32 {vr(u+2,2)}, {vr(b_,2)}, {vr(u,2)} op_sel_hi:[1,0] neg_lo:[0,1] neg_hi:[0,1]
            v_cvt_pk_bf16_f32 v{u+4}, v{u+2}, v{u+3}
            v_lshlrev_b32 v{u+2}, 16, v{u+4}
            v_and_b32 v{u+3}, 0xffff0000, v{u+4}
            v_pk_mul_f32 {vr(u+2,2)}, {vr(u+2,2)}, {vr(u,2)} op_sel:[0,1] op_sel_hi:[1,1]
            v_cvt_pk_bf16_f32 v{u+4}, v{u+2}, v{u+3}
            v_lshlrev_b32 v{u+2}, 16, v{u+4}
            v_and_b32 v{u+3}, 0xffff0000, v{u+4}
            v_pk_mul_f32 {vr(u+2,2)}, {vr(u+2,2)}, {vr(dk+2*k,2)}
            v_cvt_pk_bf16_f32 v{u+4}, v{u+2}, v{u+3}
            v_lshlrev_b32 v{u+2}, 16, v{u+4}
            v_and_b32 v{u+3}, 0xffff0000, v{u+4}
            v_pk_add_f32 {vr(b_,2)}, {vr(b_,2)}, {vr(u+2,2)}
            v_pk_add_f32 {vr(b_,2)}, {vr(b_,2)}, {vr(dk+4+2*k,2)}""")
    V.free("dk", "u", "xb", "pst", "vdk", "vb2")
    def a2(i):
        g_ = []; d = ring + 16 * (i % NR)
        for b in range(4):
            a = S()
            if i < 8:
                if b == 0: a(f"s_mov_b32 s81, {4096*i}")
                so = "s81"; va = vas
            else:
                f = i - 8; va = vam
                if f == 10: so = "s84"
                else:
                    so = "s81"
                    if b == 0: a(f"s_mov_b32 s81, {4096*f}")
            a(f"buffer_load_dwordx4 {vr(d+4*b,4)}, v{va}, s[64:67], {so} offen offset:{1024*b} sc1"); g_.append(a)
        return g_
    A2 = [a2(i) for i in range(19)]
    def p2_mfma(i):
        o = S(); d = ring + 16 * (i % NR)
        if i < 8: wb = 128 + 16 * i
        else:
            f = i - 8; wb = 16 * f if f < 8 else 128 + 16 * (f - 8)
        for b in range(4):
            for n in range(4):
                c_ = acc2 + 16 * b + 4 * n
                o(f"v_mfma_f32_16x16x32_bf16 {vr(c_,4)}, {ar(wb+4*n,4)}, {vr(d+4*b,4)}, {'0' if i == 0 else vr(c_,4)}")
        return o
    tmp = S(); poll(tmp, "s", ld_s, 4); s.extend(flat(tmp))
    stamp(s, "hfl")
    s.extend(flat(A2[0] + A2[1]))
    tmp = S(); s(f"v_add_u32 v{vfl}, {WS_FLm-WS_FLs}, v{vfl}"); flag(tmp, 0, tk_Hs); s.extend(flat(tmp))
    s.extend(flat(A2[2] + A2[3]))
    s.barrier()
    vrw = v("vrw", 4); vrr = v("vrr", 4)
    ad = S()
    ad(f"v_and_b32 v{t0}, 15, v0\nv_lshlrev_b32 v{t1}, 8, v{t0}\nv_add_u32 v{t1}, s78, v{t1}")
    for n in range(4):
        ad(f"v_add_u32 v{t2}, {4*n}, v{l4}\nv_xor_b32 v{t2}, v{t2}, v{t0}\nv_lshl_add_u32 v{vrw+n}, v{t2}, 4, v{t1}")
    ad("s_lshl_b32 s82, s3, 14")
    for i in range(4):
        ad(f"v_add_u32 v{t2}, {4*i}, v{l4}\nv_xor_b32 v{t3}, v{t2}, v{t0}\nv_lshlrev_b32 v{t3}, 4, v{t3}\nv_lshl_add_u32 v{t3}, v{t2}, 8, v{t3}\nv_add_u32 v{vrr+i}, s82, v{t3}")
    ad(f"v_lshlrev_b32 v{vxo}, 1, v{vxo}")
    late = {8 + 1: rd_w2(8), 8 + 2: rd_w2(9), 8 + 3: rd_w2(10)}
    for i in range(19):
        f = []
        if i == 1: f += list(ad)
        if i == 2:
            a = S(); a("s_mov_b32 s85, 0x8000"); a(ld_m); f.append(a)
        if i == 4:
            tmp = S(); poll(tmp, "m", ld_m, 5); s.extend(flat(tmp)); stamp(s, "Hfl")
        if i + 4 < 19: f += A2[i + 4]
        if i in late: f += list(late[i])
        stamp(s, f"q{i}")
        if i == 16: s.wait(vm=last(A2[i]), ds=0)
        else: s.wait(vm=last(A2[i]))
        s.extend(flat(merge(p2_mfma(i), f)))
    stamp(s, "q19")
    for b in range(4):
        for n in range(4):
            s(f"ds_write_b128 v{vrw+n}, {vr(acc2+16*b+4*n,4)} offset:{16384*b}")
    s.wait(ds=0)
    s.barrier()
    stamp(s, "red")
    kk = {}
    for i in range(4):
        for w_ in range(4):
            kk[i, w_] = s(f"ds_read_b128 {vr(ring+16*i+4*w_,4)}, v{vrr+i} offset:{4096*w_}")
    for i in range(4):
        r_ = ring + 16 * i; b_ = base + 4 * i
        s.wait(ds=kk[i, 3])
        for k in (0, 2):
            s(f"""v_pk_add_f32 {vr(r_+k,2)}, {vr(r_+k,2)}, {vr(r_+4+k,2)}
            v_pk_add_f32 {vr(r_+8+k,2)}, {vr(r_+8+k,2)}, {vr(r_+12+k,2)}
            v_pk_add_f32 {vr(b_+k,2)}, {vr(b_+k,2)}, {vr(r_+k,2)}
            v_pk_add_f32 {vr(b_+k,2)}, {vr(b_+k,2)}, {vr(r_+8+k,2)}""")
        s(f"s_mov_b32 s81, {ROFF[i]*2048}")
        s(f"buffer_store_dwordx4 {vr(b_,4)}, v{vxo}, s[68:71], s81 offen")
    s(f"""s_cmp_lg_u32 s2, 255
    s_cbranch_scc1 L_fin
    s_cmp_lg_u32 s3, 0
    s_cbranch_scc1 L_fin
    s_mov_b64 exec, 1
    v_mov_b32 v{t0}, 0
    buffer_store_dword v{vtag}, v{t0}, s[64:67], 0 offen sc1""")
    s.label("L_fin")
    if stamps:
        stamp(s, "ost")
        s.wait(vm=0)
        stamp(s, "end")
        s.wait(ds=0)
        s(f"""s_lshl_b32 s81, s2, 2
        s_add_u32 s81, s81, s3
        s_lshl_b32 s81, s81, 6
        s_add_u32 s81, s81, {WS_TS}
        v_mov_b32 v{t0}, s81
        s_mov_b64 exec, 1""")
        if P.get("dbg"):
            s("s_load_dwordx2 s[4:5], s[0:1], 120\ns_not_b32 s6, s94")
            s.wait(ds=0)
            s(f"v_mov_b32 v{t0}, 0\nv_mov_b32 v{t1}, s6\nglobal_atomic_umax v{t0}, v{t1}, s[4:5]")
            s("s_cmp_lg_u32 s3, 0\ns_cbranch_scc1 L_end")
        for i, r_ in enumerate([94] + STREG[:nst[0]]):
            if P.get("dbg"): s(f"v_mov_b32 v{t1}, s{r_}\nglobal_atomic_umax v{t0}, v{t1}, s[4:5] offset:{4*i+4}")
            else: s(f"v_mov_b32 v{t1}, s{r_}\nglobal_store_dword v{t0}, v{t1}, s[36:37] offset:{4*i}")
    if P.get("spin"):
        s("s_cmp_lg_u32 s2, 0\ns_cbranch_scc1 L_end")
        s.label("L_spin")
        s(f"s_memrealtime s[4:5]\ns_waitcnt lgkmcnt(0)\ns_sub_u32 s4, s4, s94\ns_cmp_lt_u32 s4, {P['spin']}\ns_cbranch_scc1 L_spin")
    s.label("L_end")
    s("s_endpgm")
    s.extend(slow)
    rep = []
    lines, added = finalize(s, rep)
    K = NAME + "_kernel"
    hdr = open("cdna_kernels/" + NAME + ".s.ref").read().split("; Override launch")[0]
    txt = hdr + "; stamps: " + " ".join(["start"] + names) + "\n; @launch grid=(256,1,1) block=(256,1,1) lds=163840\n" + '.amdgcn_target "amdgcn-amd-amdhsa--gfx950"\n'
    txt += kernel_open(K) + "\n".join(("" if l.endswith(":") else "    ") + l for l in lines) + "\nL_code_end:\n"
    if P["touch"]: txt += f".set CODE_LIM, L_code_end - L_pc - 128\n"
    txt += kernel_desc(K)
    return txt, dict(nops=added, rep=rep, vpeak=V.peak, n=len(lines))

DEF = "ld0 pro b1 p1s pass1 hst p1m Hst hfl Hfl end".split()
if __name__ == "__main__":
    txt, info = gen(stamps=None)
    open("k.s", "w").write(txt)
    print(info["nops"], info["vpeak"], info["n"])
    open("k_ts.s", "w").write(gen(stamps=DEF)[0])
    open("k_dbg.s", "w").write(gen(stamps=DEF, P=dict(dbg=1))[0])
    open("k_spin40.s", "w").write(gen(stamps=None, P=dict(spin=4000))[0])
    open("k_spin60.s", "w").write(gen(stamps=None, P=dict(spin=6000))[0])
    for i, a in enumerate(sys.argv[1:]):
        open(f"k_ts{i}.s", "w").write(gen(stamps=a.split())[0])
```

```python
import re

class Item:
    __slots__ = ("text", "kind", "tok", "vm", "ds", "label", "cost")
    def __init__(self, text=None, kind="op", vm=None, ds=None, label=None):
        self.text = text; self.kind = kind; self.vm = vm; self.ds = ds; self.label = label
        self.cost = 1

def _cls(m):
    if m.startswith("v_mfma"): return "mfma"
    if m.startswith(("buffer_", "global_", "flat_")): return "vmem"
    if m.startswith("ds_"): return "ds"
    if m.startswith(("s_load", "s_memtime", "s_memrealtime", "s_buffer_load")): return "smem"
    if m.startswith("v_"): return "valu"
    if m.startswith("s_"): return "salu"
    raise ValueError(m)

class S(list):
    def op(self, text):
        last = None
        for ln in text.strip().split("\n"):
            ln = ln.split(";")[0].strip()
            if not ln: continue
            it = Item(ln, _cls(ln.split()[0]))
            self.append(it); last = it
        return last
    __call__ = op
    def wait(self, vm=None, ds=None):
        self.append(Item(None, "wait", vm=vm, ds=ds))
    def label(self, name):
        self.append(Item(None, "label", label=name))
    def barrier(self):
        self.op("s_barrier")
    def comment(self, t):
        self.append(Item(t, "comment"))

def merge(main, fill, lead=0, tail=0):
    out = S()
    n = len(main); m = len(fill)
    span = max(n - lead - tail, 1)
    k = 0
    def put(x):
        if isinstance(x, list): out.extend(x)
        else: out.append(x)
    for i, it in enumerate(main):
        put(it)
        if i >= lead - 1:
            done = min(i - lead + 2, span) if lead else min(i + 1, span)
            while k < m and (k + 1) * span <= done * m:
                put(fill[k]); k += 1
    while k < m:
        put(fill[k]); k += 1
    return out

_REG = re.compile(r"^(-|neg\()?(abs\()?([vas])(\d+|\[(\d+):(\d+)\])\)?$")
def regs_of(tok):
    tok = tok.strip()
    if tok in ("vcc",): return {("s", 106), ("s", 107)}
    if tok == "vcc_lo": return {("s", 106)}
    if tok == "vcc_hi": return {("s", 107)}
    if tok == "exec": return {("s", 126), ("s", 127)}
    if tok == "exec_lo": return {("s", 126)}
    if tok == "exec_hi": return {("s", 127)}
    if tok == "m0": return {("s", 124)}
    m = _REG.match(tok)
    if not m: return set()
    k = m.group(3)
    if m.group(5) is not None: return {(k, i) for i in range(int(m.group(5)), int(m.group(6)) + 1)}
    return {(k, int(m.group(4)))}

TRANS = ("v_exp_f32", "v_log_f32", "v_rcp_f32", "v_rsq_f32", "v_sqrt_f32", "v_sin_f32", "v_cos_f32")
def parse(text):
    parts = text.split(None, 1)
    mn = parts[0]; rest = parts[1] if len(parts) > 1 else ""
    cls = _cls(mn)
    ops = []
    depth = 0; cur = ""
    for ch in rest:
        if ch == "[": depth += 1
        if ch == "]": depth -= 1
        if ch == "," and depth == 0: ops.append(cur.strip()); cur = ""
        else: cur += ch
    if cur.strip(): ops.append(cur.strip())
    mods = ""
    if ops:
        sp = ops[-1].split(None, 1)
        ops[-1] = sp[0]
        if len(sp) > 1: mods = sp[1]
    rs = [regs_of(o) for o in ops]
    W = set(); R = set(); ex = {}
    base = mn.replace("_e32", "").replace("_e64", "").replace("_dpp", "").replace("_sdwa", "")
    if cls == "mfma":
        W = rs[0]; R = rs[1] | rs[2] | rs[3]
        ex = dict(A=rs[1] | rs[2], C=rs[3], D=rs[0], passes=8 if "32x32x16" in mn else 4)
    elif cls == "valu":
        if base.startswith("v_cmp"):
            W = rs[0]; R = set().union(*rs[1:])
        elif base in ("v_permlane32_swap_b32", "v_permlane16_swap_b32"):
            W = rs[0] | rs[1]; R = rs[0] | rs[1]; ex["perm"] = True
        elif base in ("v_add_co_u32", "v_sub_co_u32"):
            W = rs[0] | rs[1]; R = set().union(*rs[2:])
        elif base in ("v_addc_co_u32",):
            W = rs[0] | rs[1]; R = set().union(*rs[2:])
        else:
            W = rs[0]; R = set().union(*rs[1:]) if len(rs) > 1 else set()
            if base.startswith(("v_fmac", "v_dot2c")): R |= rs[0]
            if base == "v_cndmask_b32" and len(ops) == 3: R |= regs_of("vcc")
        if "row_" in mods or "quad_perm" in mods or mn.endswith("_dpp"):
            ex["dpp"] = True; R |= rs[0]
        if base in ("v_readfirstlane_b32", "v_readlane_b32"): ex["rdlane"] = True
        if base in TRANS: ex["trans"] = True
    elif cls == "vmem":
        lds = " lds" in (" " + mods) or "load_lds" in mn
        if "store" in mn or "atomic" in mn:
            R = set().union(*rs)
            if mn.startswith("buffer_"): data = rs[0]
            else: data = rs[1]
            ex["stdata"] = data; ex["wide"] = ("x4" in mn or "x3" in mn)
        elif lds:
            R = set().union(*rs) | regs_of("m0"); ex["ldsdma"] = True
        elif mn in ("buffer_wbl2", "buffer_inv"):
            pass
        else:
            W = rs[0]; R = set().union(*rs[1:])
    elif cls == "ds":
        if "read" in mn or "bpermute" in mn or "swizzle" in mn:
            W = rs[0]; R = set().union(*rs[1:])
        else:
            R = set().union(*rs)
    elif cls == "smem":
        W = rs[0]; R = set().union(*rs[1:]) if len(rs) > 1 else set()
    else:
        if base.startswith(("s_cmp", "s_cbranch", "s_branch", "s_waitcnt", "s_barrier", "s_nop", "s_sleep", "s_endpgm", "s_setprio", "s_bitcmp")):
            R = set().union(*rs) if rs else set()
        else:
            W = rs[0]; R = set().union(*rs[1:]) if len(rs) > 1 else set()
            if "saveexec" in base: W |= regs_of("exec")
    return dict(mn=mn, base=base, cls=cls, W=W, R=R, ex=ex, text=text)

def vonly(s): return {r for r in s if r[0] in "va"}
def sonly(s): return {r for r in s if r[0] == "s"}

def need(p, c):
    n = 0
    pc, cc = p["cls"], c["cls"]
    if pc == "valu":
        wv = vonly(p["W"]); ws = sonly(p["W"])
        if cc == "mfma" and wv & c["R"]: n = max(n, 2)
        if cc == "valu":
            if c["ex"].get("dpp") and wv & c["R"]: n = max(n, 2)
            if c["ex"].get("perm") and wv & c["R"]: n = max(n, 2)
            if c["ex"].get("rdlane") and wv & c["R"]: n = max(n, 1)
            if p["ex"].get("trans") and not c["ex"].get("trans") and wv & c["R"]: n = max(n, 1)
            if ws & c["R"]: n = max(n, 4 if c["ex"].get("rdlane") else 2)
        if cc == "vmem" and ws & c["R"]: n = max(n, 5)
        if p["base"].startswith("v_dot") and c["base"] != p["base"] and wv & (c["R"] | c["W"]): n = max(n, 3)
    if pc == "salu":
        if cc == "vmem" and c["ex"].get("ldsdma") and regs_of("m0") & p["W"]: n = max(n, 1)
    if pc == "vmem" and p["ex"].get("wide"):
        if cc == "valu" and p["ex"]["stdata"] & c["W"]: n = max(n, 2)
        elif p["ex"]["stdata"] & c["W"]: n = max(n, 1)
    if pc == "mfma":
        P = p["ex"]["passes"]; D = p["ex"]["D"]
        if cc == "mfma":
            if D & c["ex"]["A"]: n = max(n, P + 4)
            if D & c["ex"]["C"] and not (D == c["ex"]["C"] and P == c["ex"]["passes"]): n = max(n, P + 2)
            if D & c["ex"]["D"] and not (D == c["ex"]["C"]): n = max(n, P + 2)
        elif cc in ("valu", "vmem", "ds"):
            if D & (c["R"] | c["W"]): n = max(n, P + 4)
            if cc == "valu" and p["ex"]["C"] & c["W"]: n = max(n, P - 1)
    return n

def finalize(items, report=None):
    vm_idx = {}; ds_idx = {}
    nvm = 0; nds = 0
    seq = []
    smem_pending = False
    for it in items:
        if it.kind == "vmem":
            vm_idx[id(it)] = nvm; nvm += 1; seq.append(it.text)
        elif it.kind == "ds":
            ds_idx[id(it)] = nds; nds += 1; seq.append(it.text)
        elif it.kind == "wait":
            parts = []
            if it.vm is not None:
                if it.vm == 0: n = 0
                else:
                    toks = it.vm if isinstance(it.vm, list) else [it.vm]
                    n = nvm - 1 - max(vm_idx[id(t)] for t in toks)
                if n <= 63: parts.append(f"vmcnt({n})")
            if it.ds is not None:
                if it.ds == 0: n = 0
                else:
                    toks = it.ds if isinstance(it.ds, list) else [it.ds]
                    n = nds - 1 - max(ds_idx[id(t)] for t in toks)
                parts.append(f"lgkmcnt({min(n, 15)})")
            if parts: seq.append("s_waitcnt " + " ".join(parts))
        elif it.kind == "label": seq.append(it.label + ":")
        elif it.kind == "comment": seq.append("; " + it.text)
        else: seq.append(it.text)
    out = []; hist = []
    added = 0
    for ln in seq:
        if ln.endswith(":") or ln.startswith(";"):
            out.append(ln); continue
        c = parse(ln)
        req = 0
        dist = 0
        for p, st in reversed(hist):
            r = need(p, c) - dist
            if r > req: req = r
            dist += st
            if dist >= 24: break
        if req > 0:
            added += req
            if report is not None: report.append((req, ln))
            k = req
            while k > 0:
                t = min(k, 16)
                out.append(f"s_nop {t-1}"); hist.append((parse(f"s_nop {t-1}"), t)); k -= t
        st = 1
        if c["mn"] == "s_nop": st = int(ln.split()[1]) + 1
        out.append(ln); hist.append((c, st))
        if len(hist) > 40: hist = hist[-30:]
    return out, added

class Alloc:
    def __init__(self, n, start=0):
        self.n = n; self.used = {}; self.start = start; self.peak = 0
    def alloc(self, name, cnt=1, align=1, at=None):
        if align > 2: align = 2
        rng = [at] if at is not None else (range(self.n - cnt, self.start - 1, -1) if cnt >= 12 else range(self.start, self.n - cnt + 1))
        for b in rng:
            if b % align: continue
            if all((b + i) not in self.used for i in range(cnt)):
                for i in range(cnt): self.used[b + i] = name
                self.peak = max(self.peak, b + cnt)
                return b
        raise RuntimeError(f"out of registers for {name} x{cnt}; used={len(self.used)}")
    def free(self, *names):
        for nm in names:
            ks = [k for k, v in self.used.items() if v == nm]
            assert ks, nm
            for k in ks: del self.used[k]

def weave(main, *fills):
    n = len(main)
    slots = [[] for _ in range(n + 1)]
    for items, lo, hi in fills:
        m = len(items)
        for k, it in enumerate(items):
            pos = lo + (hi - lo) * (k + 1) / m if m else 0
            idx = min(n, max(1 if n else 0, int(round(pos * n))))
            slots[idx].append(it)
    out = S()
    def put(x):
        if isinstance(x, list):
            for y in x: put(y)
        else: out.append(x)
    put(slots[0])
    for i, it in enumerate(main):
        put(it); put(slots[i + 1])
    return out

def chop(items, k):
    m = len(items)
    return [items[i * m // k:(i + 1) * m // k] for i in range(k)]
```

```python
import sys
from strm import *
from asmlib import NAME, kernel_open, kernel_desc

WS_STAT = 0x1000
WS_CAR  = 0x8000
WS_FLs  = 0x30000
WS_FLm  = 0x31000
WS_Hm   = 0x100000
WS_Hs   = 0x800000
WS_TS   = 0x1000000
WS_REC  = 0x1000000
OOB     = 0x40000000
KB = 1024
def XSLOT(k): return 16 * KB * (k & 3)
def BSLOT(k): return 64 * KB + 8 * KB * (k & 3)
def W1SLOT(k): return (96 * KB + 12 * KB * k) if k < 5 else 12 * KB * (k - 5)
RING = {c: 16 * i * KB for i, c in enumerate("XYZABCDEF")}
W2_SL = "ABCDAEBFCDE"
C_SL = "XYZABXYZ"
S0 = 156 * KB
S0_RSTD = S0; S0_PK = S0 + 512; S0_BCS = S0 + 1024; S0_WT = S0 + 2048
S1_T = 144 * KB; S1_CP = S1_T + 8 * KB; S2_WCS = S1_CP + 2 * KB
LOG2E = 0x3fb8aa3b
DEFP = dict(cfg="A", rotx="", rota=0, touch=True, t2=1, outmod="", w2at=[1, 4, 7, 10, 12, 15, 18, 20, 23, 26, 29], r2at=[10, 13, 16, 20, 22, 27, 29])

def flat(g):
    o = S()
    def put(x):
        if isinstance(x, list):
            for y in x: put(y)
        else: o.append(x)
    put(g)
    return o

def gen(stamps=None, P=None):
    P = dict(DEFP, **(P or {}))
    V = Alloc(256, 1)
    s = S(); slow = S()
    nst = [0]; names = []
    STREG = [96, 98, 20, 22, 24, 26, 28, 30, 32, 34]
    def stamp(o, name):
        if not stamps: return
        for kind, ins in (("", "s_memrealtime"), ("c:", "s_memtime")):
            if kind + name in stamps:
                r = STREG[nst[0]]; nst[0] += 1; names.append(kind + name)
                o(f"{ins} s[{r}:{r+1}]")
    def v(name, cnt=1, align=1): return V.alloc(name, cnt, align)
    def vr(b, n): return f"v[{b}:{b+n-1}]"
    def ar(b, n): return f"a[{b}:{b+n-1}]"
    def last(g): return g[-1][-1]

    s("s_cmp_ge_u32 s2, 256\ns_cbranch_scc1 L_end")
    s("s_load_dwordx16 s[4:19], s[0:1], 0\ns_load_dwordx16 s[20:35], s[0:1], 64\ns_load_dwordx2 s[36:37], s[0:1], 128")
    if stamps or P.get("spin"): s("s_memrealtime s[100:101]")
    t0 = v("t0"); t1 = v("t1"); t2 = v("t2"); t3 = v("t3")
    s(f"v_lshrrev_b32 v{t0}, 6, v0\nv_and_b32 v0, 63, v0")
    s(f"v_readfirstlane_b32 s3, v{t0}")
    cfg = P["cfg"]
    if cfg == "A":
        s("""s_and_b32 s38, s2, 7
        s_lshl_b32 s38, s38, 1
        s_bfe_u32 s39, s2, 0x10003
        s_add_u32 s38, s38, s39
        s_lshr_b32 s39, s2, 4
        s_and_b32 s74, s39, 7""")
    else:
        rb = 2 if cfg == "C" else 3
        s(f"""s_and_b32 s38, s2, {(16 >> rb) - 1}
        s_lshl_b32 s38, s38, {rb}
        s_bfe_u32 s39, s2, {(rb << 16) | 3:#x}
        s_add_u32 s38, s38, s39
        s_bfe_u32 s39, s2, {((rb - 1) << 16) | (4 - rb):#x}
        s_lshl_b32 s39, s39, {5 - rb}
        s_lshr_b32 s81, s2, {3 + rb}
        s_add_u32 s39, s39, s81
        s_lshr_b32 s74, s2, 5""")
    rx = P["rotx"]
    s("s_mov_b32 s95, 0")
    if "x" in rx: s("s_and_b32 s95, s2, 7")
    if "t" in rx: s("s_xor_b32 s81, s38, s39\ns_and_b32 s81, s81, 1\ns_lshl_b32 s81, s81, 2\ns_add_u32 s95, s95, s81")
    s("""s_lshl_b32 s95, s95, 7
    s_mul_i32 s77, s39, 3
    s_lshl_b32 s81, s39, 1
    s_add_u32 s81, s81, 11
    s_min_u32 s77, s77, s81
    s_lshl_b32 s78, s3, 12
    s_lshl_b32 s79, s3, 11""")
    rho = v("rho"); hh = v("hh"); lam = v("lam"); l4 = v("l4"); p8 = v("p8")
    s(f"""v_and_b32 v{rho}, 31, v0
    v_lshrrev_b32 v{hh}, 5, v0
    v_lshrrev_b32 v{lam}, 3, v0
    v_lshrrev_b32 v{l4}, 4, v0
    v_and_b32 v{p8}, 7, v0""")
    vcd = v("vcd", 4); v2r = v("v2r", 8); vcr = v("vcr", 4); rp = v("rp"); cc = v("cc")
    vdk = v("vdk", 2, 2); vb2 = v("vb2", 2, 2)
    vsr = v("vsr"); vsst = v("vsst")
    s(f"""s_lshl_b32 s81, s38, 7
    s_lshl_b32 s82, s39, 3
    s_add_u32 s82, s81, s82
    s_lshl_b32 s83, s3, 1
    s_add_u32 s82, s82, s83
    v_add_u32 v{vsst}, s82, v{hh}
    v_lshlrev_b32 v{t1}, 4, v{rho}
    v_lshl_add_u32 v{vsr}, v{vsst}, 10, v{t1}""")
    kE = v("kE"); kO = v("kO"); vxd = v("vxd", 4); vbd = v("vbd", 2)
    s(f"""v_xor_b32 v{kE}, v{p8}, v{l4}
    v_lshlrev_b32 v{kE}, 4, v{kE}
    v_xor_b32 v{kO}, 64, v{kE}
    s_lshl_b32 s82, s3, 5
    s_add_u32 s81, s81, s82
    v_and_b32 v{t0}, 3, v{lam}
    v_lshl_add_u32 v{t0}, v{hh}, 4, v{t0}
    v_add_u32 v{t0}, s81, v{t0}
    v_lshlrev_b32 v{t0}, 10, v{t0}
    v_add_u32 v{vxd}, v{t0}, v{kE}
    v_add_u32 v{t1}, v{t0}, v{kO}
    v_add_u32 v{vxd+1}, {3072}, v{t1}
    v_add_u32 v{vxd+2}, {2*3072}, v{vxd}
    v_add_u32 v{vxd+3}, {3*3072}, v{t1}
    s_lshl_b32 s81, s39, 5
    s_and_b32 s82, s3, 1
    s_lshl_b32 s82, s82, 4
    s_add_u32 s81, s81, s82
    v_add_u32 v{t0}, s81, v{lam}
    v_lshlrev_b32 v{t0}, 10, v{t0}
    v_add_u32 v{vbd}, v{t0}, v{kE}
    v_add_u32 v{t1}, v{t0}, v{kO}
    v_add_u32 v{vbd+1}, {7168}, v{t1}""")
    vp2 = v("vp2"); vf2 = v("vf2"); vn2 = v("vn2")
    s(f"""s_lshl_b32 s81, s39, 6
    v_lshl_add_u32 v{vp2}, v{rho}, 1, s81
    s_lshl_b32 s81, s77, 6
    v_lshl_add_u32 v{vf2}, v{rho}, 1, s81
    s_lshl_b32 s81, s74, 7
    v_and_b32 v{t0}, 15, v0
    v_lshl_add_u32 v{vn2}, v{t0}, 3, s81""")
    if P["touch"]:
        toff = v("toff"); ta = v("ta", 2, 2); tb = v("tb", 2); ta2 = v("ta2", 2, 2)
        s(f"""s_lshl_b32 s81, s2, 2
        s_add_u32 s81, s81, s3
        s_lshl_b32 s82, s81, 9
        s_mul_i32 s81, s81, 1376
        v_and_b32 v{t0}, 3, v0
        v_lshl_add_u32 v{t0}, v{t0}, 7, s82
        v_and_b32 v{t1}, 15, v0
        v_lshl_add_u32 v{t1}, v{t1}, 7, s81
        v_cmp_gt_u32 vcc, 16, v0
        s_getpc_b64 s[90:91]""")
        s.label("L_pc")
        s(f"""s_lshr_b32 s81, s2, 3
        s_lshl_b32 s81, s81, 2
        v_cndmask_b32 v{toff}, v{t1}, v{t0}, vcc
        s_add_u32 s81, s81, s3
        s_lshl_b32 s81, s81, 8
        v_and_b32 v{t1}, 1, v0
        v_lshl_add_u32 v{t1}, v{t1}, 7, s81
        v_min_u32 v{t1}, CODE_LIM, v{t1}
        v_cmp_gt_u32 vcc, 32, v0
        v_cmp_gt_u32 s[92:93], 4, v0
        v_cmp_gt_u32 s[88:89], 16, v0
        v_cndmask_b32 v{toff}, v{t1}, v{toff}, vcc""")
    s.wait(ds=0)
    stamp(s, "ka")
    def srd(o, b, p, n):
        o(f"s_mov_b32 s{b}, s{p}\ns_mov_b32 s{b+1}, s{p+1}\ns_mov_b32 s{b+2}, {n}\ns_mov_b32 s{b+3}, 0x20000")
    srd(s, 40, 4, 0x200000)
    vst = v("vst", 8, 4)
    s(f"buffer_load_dwordx4 {vr(vst,4)}, v{vsr}, s[40:43], 0 offen")
    tk_st = s(f"buffer_load_dwordx4 {vr(vst+4,4)}, v{vsr}, s[40:43], 0 offen offset:512")
    s("s_load_dword s72, s[36:37], 0")
    def touch_addr(o, dst, pa, pb, pc, code):
        for k in range(2):
            if code: o(f"v_mov_b32 v{dst+k}, s{90+k}\nv_mov_b32 v{t0}, s{pc+k}\nv_cndmask_b32 v{dst+k}, v{dst+k}, v{t0}, vcc")
            else: o(f"v_mov_b32 v{dst+k}, s{pc+k}")
            o(f"v_mov_b32 v{t0}, s{pb+k}\nv_cndmask_b32 v{dst+k}, v{dst+k}, v{t0}, s[88:89]")
            o(f"v_mov_b32 v{t0}, s{pa+k}\nv_cndmask_b32 v{dst+k}, v{dst+k}, v{t0}, s[92:93]")
        o(f"v_add_co_u32 v{dst}, vcc, v{dst}, v{toff}\nv_addc_co_u32 v{dst+1}, vcc, 0, v{dst+1}, vcc")
    if P["touch"]:
        touch_addr(s, ta, 10, 12, 24, True)
        s(f"""s_mov_b32 exec_lo, 0x07ff00ff
        s_mov_b32 exec_hi, 3
        global_load_dword v{tb}, {vr(ta,2)}, off
        s_mov_b64 exec, -1""")
    stamp(s, "tch")
    s("s_cmp_lt_u32 s3, 2\ns_cselect_b32 s44, s10, s12\ns_cselect_b32 s45, s11, s13\ns_mov_b32 s46, 0x80000\ns_mov_b32 s47, 0x20000")
    def group(first, loads):
        g = []
        for i, l in enumerate(loads):
            a = S()
            if i in first: a(first[i])
            a(l); g.append(a)
        return g
    def dma_xb(kc):
        return group({0: f"s_add_u32 m0, s78, {XSLOT(kc)}\ns_add_u32 s81, s95, {128*kc}\ns_and_b32 s81, s81, 0x380", 4: f"s_add_u32 m0, s79, {BSLOT(kc)}\ns_nop 0"},
                     [f"buffer_load_dwordx4 v{vxd+q}, s[40:43], s81 offen offset:{1024*q} lds" for q in range(4)] +
                     [f"buffer_load_dwordx4 v{vbd+q}, s[44:47], s81 offen offset:{1024*q} lds" for q in range(2)])
    XB = [dma_xb(k) for k in range(8)]
    vlr = v("vlr"); vli = v("vli"); vld = v("vld")
    vb1 = v("vb1", 3)
    s(f"global_load_ushort v{vlr}, v{vp2}, s[6:7]")
    s(f"global_load_ushort v{vli}, v{vp2}, s[8:9]")
    s(f"global_load_ushort v{vld}, v{vp2}, s[18:19]")
    srd(s, 84, 26, 2752)
    for t in range(3):
        s(f"buffer_load_ushort v{vb1+t}, v{vf2}, s[84:87], 0 offen offset:{64*t}")
    s(f"global_load_dwordx2 {vr(vdk,2)}, v{vn2}, s[20:21]")
    s(f"global_load_dwordx2 {vr(vb2,2)}, v{vn2}, s[30:31]")
    stamp(s, "sml")
    if P["touch"]: touch_addr(s, ta2, 14, 16, 28, False)
    srd(s, 48, 24, 512 * 2752); srd(s, 52, 14, 0x80000); srd(s, 56, 16, 0x80000); srd(s, 60, 28, 1376 * 1024)
    srd(s, 64, 36, WS_REC); srd(s, 68, 32, 0x400000)
    V.free("vp2", "vf2", "vn2", "vsr")
    vxr = v("vxr", 4); vbr = v("vbr", 4)
    s(f"""v_lshlrev_b32 v{vsst}, 3, v{vsst}
    v_add_u32 v{vsst}, {WS_STAT}, v{vsst}
    v_bfe_u32 v{t2}, v{rho}, 1, 3
    v_lshlrev_b32 v{t3}, 7, v{rho}""")
    for st in range(4):
        s(f"""s_add_u32 s82, s3, {st}
        s_and_b32 s82, s82, 3
        s_lshl_b32 s82, s82, 1
        v_add_u32 v{t0}, s82, v{hh}
        v_xor_b32 v{t0}, v{t0}, v{t2}
        v_lshl_add_u32 v{t0}, v{t0}, 4, v{t3}
        v_add_u32 v{vxr+st}, s78, v{t0}
        v_add_u32 v{vbr+st}, {64*KB}, v{t0}""")
    vsel = v("vsel", 12, 4)
    s(f"v_mov_b32 v{t0}, 0x3f803f80")
    for t in range(3):
        s(f"v_cmp_eq_u32 vcc, {t}, v{rho}\ns_nop 1\nv_cndmask_b32 v{vsel+4*t}, 0, v{t0}, vcc")
        for k in (1, 2, 3): s(f"v_mov_b32 v{vsel+4*t+k}, v{vsel+4*t}")
    if cfg == "A": s("s_lshr_b32 s75, s39, 3\ns_lshl_b32 s76, s38, 1\ns_add_u32 s75, s75, s76")
    else: s("s_and_b32 s75, s2, 7\ns_lshl_b32 s75, s75, 2\ns_bfe_u32 s76, s2, 0x20003\ns_add_u32 s75, s75, s76\ns_lshl_b32 s76, s38, 1")
    s("""s_lshr_b32 s82, s3, 1
    s_add_u32 s76, s76, s82
    s_mul_i32 s80, s3, 3072""")
    if P["rota"]: s("s_and_b32 s94, s74, 1\ns_mul_i32 s94, s94, 5")
    else: s("s_mov_b32 s94, 0")
    stamp(s, "adr")
    s.extend(flat(XB[0]))
    stamp(s, "xb0")

    st = S()
    xf = v("xf", 16, 2); acc = v("sacc", 2, 2); mean = v("mean", 2, 2)
    for i in range(8):
        st(f"v_lshlrev_b32 v{xf+2*i}, 16, v{vst+i}\nv_and_b32 v{xf+2*i+1}, 0xffff0000, v{vst+i}")
    st(f"v_pk_add_f32 {vr(acc,2)}, {vr(xf,2)}, {vr(xf+2,2)}")
    for i in range(2, 8): st(f"v_pk_add_f32 {vr(acc,2)}, {vr(acc,2)}, {vr(xf+2*i,2)}")
    def red32(o, r):
        o(f"v_add_f32 v{r}, v{r}, v{r+1}")
        for k in (8, 4, 2, 1): o(f"v_add_f32_dpp v{r}, v{r}, v{r} row_ror:{k} row_mask:0xf bank_mask:0xf")
        o(f"v_mov_b32 v{r+1}, v{r}\nv_permlane16_swap_b32 v{r}, v{r+1}\nv_add_f32 v{r}, v{r}, v{r+1}")
    red32(st, acc)
    st(f"v_mul_f32 v{mean}, 0x3b000000, v{acc}")
    for i in range(8): st(f"v_pk_add_f32 {vr(xf+2*i,2)}, {vr(xf+2*i,2)}, {vr(mean,2)} op_sel_hi:[1,0] neg_lo:[0,1] neg_hi:[0,1]")
    st(f"v_pk_mul_f32 {vr(acc,2)}, {vr(xf,2)}, {vr(xf,2)}")
    for i in range(1, 8): st(f"v_pk_fma_f32 {vr(acc,2)}, {vr(xf+2*i,2)}, {vr(xf+2*i,2)}, {vr(acc,2)}")
    red32(st, acc)
    st(f"""v_mul_f32 v{acc}, 0x3b000000, v{acc}
    v_cvt_pk_bf16_f32 v{acc}, v{acc}, v{acc}
    v_lshlrev_b32 v{acc}, 16, v{acc}
    v_add_f32 v{acc}, 0x3727c5ac, v{acc}
    v_cvt_pk_bf16_f32 v{acc}, v{acc}, v{acc}
    v_lshlrev_b32 v{acc}, 16, v{acc}
    v_sqrt_f32 v{acc}, v{acc}
    v_cvt_pk_bf16_f32 v{acc}, v{mean}, v{acc}""")
    s.wait(vm=tk_st)
    stamp(s, "stw")
    s.extend(weave(st, (XB[1], 0.0, 0.9)))
    s.wait(ds=0)
    s(f"""s_add_u32 s72, s72, 1
    s_mov_b32 s73, s72
    v_mov_b32 v{acc+1}, s72
    s_mov_b32 exec_lo, 1
    s_mov_b32 exec_hi, 1
    buffer_store_dwordx2 {vr(acc,2)}, v{vsst}, s[64:67], 0 offen sc1
    s_mov_b64 exec, -1""")
    stamp(s, "sts")
    V.free("xf", "sacc", "mean", "vst", "vsst")
    s.extend(flat(XB[2]))
    stamp(s, "pro")

    fw = S()
    vwd = v("vwd", 3); vwr = v("vwr", 4)
    fw("s_mul_i32 s82, s3, 192\ns_lshl_b32 s83, s77, 6\ns_mov_b32 s88, 0x15555556\ns_movk_i32 s89, 2752")
    for i in range(3):
        fw(f"""v_add_u32 v{t0}, s82, v0
        v_add_u32 v{t0}, {64*i}, v{t0}
        v_mul_hi_u32 v{t1}, v{t0}, s88
        v_mul_u32_u24 v{t2}, 12, v{t1}
        v_sub_u32 v{t2}, v{t0}, v{t2}
        v_lshlrev_b32 v{t2}, 4, v{t2}
        v_mul_lo_u32 v{t1}, v{t1}, s89
        v_add3_u32 v{vwd+i}, v{t1}, v{t2}, s83""")
        if i: fw(f"v_subrev_u32 v{vwd+i}, {1024*i}, v{vwd+i}")
    vtr = v("vtr"); vsg = v("vsg"); sg = v("sg", 2, 2)
    fw(f"""v_bfe_u32 v{t0}, v{rho}, 2, 1
    v_lshlrev_b32 v{t0}, 4, v{t0}
    v_lshrrev_b32 v{t1}, 3, v{rho}
    v_lshl_add_u32 v{t0}, v{t1}, 2, v{t0}
    v_and_b32 v{t1}, 3, v{rho}
    v_add_u32 v{t0}, v{t0}, v{t1}
    s_lshl_b32 s82, s3, 5
    v_add_u32 v{vtr}, s82, v{t0}
    s_lshl_b32 s82, s38, 10
    s_add_u32 s82, s82, {WS_STAT}
    v_lshl_add_u32 v{vsg}, v{vtr}, 3, s82
    v_lshlrev_b32 v{vtr}, 2, v{vtr}
    v_add_u32 v{vtr}, {S0_RSTD}, v{vtr}""")
    fw(f"""v_bfe_u32 v{rp}, v0, 2, 2
    v_and_b32 v{cc}, 3, v0
    v_lshl_add_u32 v{t0}, v{hh}, 3, v{rp}
    v_mul_u32_u24 v{t0}, 192, v{t0}
    v_and_b32 v{t1}, 1, v{l4}
    v_lshl_add_u32 v{t0}, v{t1}, 5, v{t0}
    v_lshl_add_u32 v{t0}, v{cc}, 3, v{t0}""")
    for st_ in range(4):
        fw(f"""s_add_u32 s82, s3, {st_}
        s_and_b32 s82, s82, 3
        s_mul_i32 s82, s82, 3072
        s_add_u32 s82, s82, {96*KB}
        v_add_u32 v{vwr+st_}, s82, v{t0}""")
    v2d = v("v2d", 4)
    fw(f"""s_lshl_b32 s82, s74, 6
    v_add_u32 v{t0}, s82, v{lam}
    v_lshlrev_b32 v{t0}, 10, v{t0}
    s_lshl_b32 s82, s3, 8
    v_add_u32 v{t0}, s82, v{t0}
    v_add_u32 v{vcd}, v{t0}, v{kE}
    v_add_u32 v{t1}, v{t0}, v{kO}
    v_add_u32 v{vcd+1}, 7168, v{t1}
    v_add_u32 v{vcd+2}, {2*7168}, v{vcd}
    v_add_u32 v{vcd+3}, {3*7168}, v{t1}
    s_mul_i32 s82, s3, 352
    v_add_u32 v{t0}, s82, v{lam}
    v_lshlrev_b32 v{t0}, 10, v{t0}
    v_lshlrev_b32 v{t1}, 1, v{l4}
    v_xor_b32 v{t1}, v{p8}, v{t1}
    v_lshl_add_u32 v{t0}, v{t1}, 4, v{t0}
    s_lshl_b32 s82, s74, 7
    v_add_u32 v{v2d}, s82, v{t0}""")
    for q in (1, 2, 3): fw(f"v_add_u32 v{v2d+q}, {7168*q}, v{v2d}")
    Lr = v("Lr"); Li = v("Li"); PA = v("PA", 2, 2); PK = v("PK", 2, 2); P16 = v("P16", 2, 2); P32 = v("P32", 2, 2)
    PG = v("PG", 2, 2); PW0 = v("PW0", 2, 2); PW1 = v("PW1", 2, 2)
    fw(f"""v_lshlrev_b32 v{vlr}, 16, v{vlr}
    v_lshlrev_b32 v{vli}, 16, v{vli}
    v_lshlrev_b32 v{vld}, 16, v{vld}
    v_mul_f32 v{vld}, {LOG2E:#x}, v{vld}
    v_exp_f32 v{vld}, v{vld}
    s_nop 0
    v_cvt_pk_bf16_f32 v{vld}, v{vld}, v{vld}
    v_lshlrev_b32 v{vld}, 16, v{vld}
    v_mul_f32 v{Lr}, v{vld}, v{vlr}
    v_mul_f32 v{Li}, v{vld}, v{vli}
    v_mul_f32 v{Lr}, {LOG2E:#x}, v{Lr}
    v_mul_f32 v{Li}, 0.15915494, v{Li}""")
    def cpow(dst, n):
        fw(f"""v_mul_f32 v{t0}, {n}, v{Lr}
        v_mul_f32 v{t1}, {n}, v{Li}
        v_exp_f32 v{t0}, v{t0}
        v_fract_f32 v{t1}, v{t1}
        v_cos_f32 v{dst}, v{t1}
        v_sin_f32 v{dst+1}, v{t1}
        v_mul_f32 v{dst}, v{t0}, v{dst}
        v_mul_f32 v{dst+1}, -v{t0}, v{dst+1}""")
    cpow(PA, "1.0")
    fw(f"""v_add_f32 v{t0}, -1.0, v{PA}
    v_mul_f32 v{t1}, v{vlr}, v{vlr}
    v_fmac_f32 v{t1}, v{vli}, v{vli}
    v_rcp_f32 v{t1}, v{t1}
    v_mul_f32 v{PK}, v{t0}, v{vlr}
    v_fma_f32 v{PK}, -v{PA+1}, v{vli}, v{PK}
    v_mul_f32 v{PK+1}, v{t0}, v{vli}
    v_fmac_f32 v{PK+1}, v{PA+1}, v{vlr}
    v_add_f32 v{t1}, v{t1}, v{t1}
    v_mul_f32 v{PK}, v{PK}, v{t1}
    v_mul_f32 v{PK+1}, v{PK+1}, v{t1}""")
    cpow(P16, "0x41800000"); cpow(P32, "0x42000000")
    fw(f"s_lshl_b32 s83, s3, 5\nv_lshl_add_u32 v{t2}, v{hh}, 4, s83\nv_cvt_f32_u32 v{t2}, v{t2}")
    cpow(PG, f"v{t2}")
    vcg = v("vcg", 2)
    fw(f"""s_lshl_b32 s83, s3, 2
    v_lshl_add_u32 v{t3}, v{hh}, 1, s83
    s_lshl_b32 s82, s39, 13
    s_add_u32 s82, s82, {WS_CAR}
    v_lshlrev_b32 v{t2}, 4, v{rho}
    v_lshl_add_u32 v{t2}, v{t3}, 9, v{t2}
    v_add_u32 v{t2}, s82, v{t2}
    v_mov_b32 v{t1}, {OOB}
    v_cmp_gt_u32 s[90:91], s38, v{t3}
    v_add_u32 v{t0}, 1, v{t3}
    v_cmp_gt_u32 s[92:93], s38, v{t0}
    v_cndmask_b32 v{vcg}, v{t1}, v{t2}, s[90:91]
    v_sub_u32 v{t3}, s38, v{t0}
    v_cndmask_b32 v{vcg+1}, v{t1}, v{t2}, s[92:93]
    v_max_i32 v{t2}, 0, v{t3}
    v_lshlrev_b32 v{t2}, 7, v{t2}
    v_cvt_f32_u32 v{t2}, v{t2}""")
    cpow(PW0, f"v{t2}")
    fw(f"v_add_u32 v{t3}, -1, v{t3}\nv_max_i32 v{t2}, 0, v{t3}\nv_lshlrev_b32 v{t2}, 7, v{t2}\nv_cvt_f32_u32 v{t2}, v{t2}")
    cpow(PW1, f"v{t2}")
    vcs = v("vcs")
    fw(f"""s_lshl_b32 s82, s3, 2
    v_lshl_add_u32 v{vcs}, v{rho}, 4, s82
    v_and_b32 v{t0}, 15, v0
    v_lshrrev_b32 v{t1}, 1, v{t0}
    v_xor_b32 v{t1}, v{t1}, v{l4}
    v_lshlrev_b32 v{t0}, 7, v{t0}
    v_add_u32 v{t0}, s78, v{t0}
    v_lshl_add_u32 v{vcr}, v{t1}, 4, v{t0}
    v_xor_b32 v{vcr+1}, 64, v{vcr}
    v_add_u32 v{vcr+2}, {64*KB}, v{vcr}
    v_add_u32 v{vcr+3}, {64*KB}, v{vcr+1}
    s_add_u32 s82, s78, {48*KB}
    v_and_b32 v{t0}, 1, v{l4}
    v_lshrrev_b32 v{t1}, 1, v{rp}
    v_lshl_add_u32 v{t1}, v{t0}, 1, v{t1}
    v_lshl_add_u32 v{t0}, v{t0}, 2, v{rp}
    v_lshl_add_u32 v{t0}, v{hh}, 4, v{t0}
    v_lshlrev_b32 v{t0}, 7, v{t0}
    v_lshl_add_u32 v{t0}, v{cc}, 3, v{t0}
    v_add_u32 v{t0}, s82, v{t0}""")
    for n in range(4):
        fw(f"""v_xor_b32 v{t2}, {n}, v{t1}
        v_lshl_add_u32 v{v2r+n}, v{t2}, 5, v{t0}
        v_add_u32 v{v2r+4+n}, {64*KB}, v{v2r+n}""")
    FW = chop(list(fw), 7)

    accr = v("accr", 16, 4); acci = v("acci", 16, 4); duty = v("duty", 16, 4)
    bf = v("bf", 64, 4)
    def dma_w1(kc):
        return group({0: f"s_add_u32 m0, s80, {W1SLOT(kc)}\ns_add_u32 s81, s95, {128*kc}\ns_and_b32 s81, s81, 0x380\ns_mulk_i32 s81, 1376"},
                     [f"buffer_load_dwordx4 v{vwd+i}, s[48:51], s81 offen offset:{1024*i} lds" for i in range(3)])
    W1 = [dma_w1(k) for k in range(8)]
    def p1s_reads(kc):
        o = S(); b = bf + 32 * (kc & 1)
        for st_ in range(4):
            o(f"ds_read_b128 {ar(16*kc+4*st_,4)}, v{vxr+st_} offset:{XSLOT(kc)}")
            o(f"ds_read_b128 {vr(b+8*st_,4)}, v{vbr+st_} offset:{BSLOT(kc)-64*KB}")
            o(f"ds_read_b128 {vr(b+8*st_+4,4)}, v{vbr+st_} offset:{BSLOT(kc)-64*KB+4096}")
        return o
    M32 = "v_mfma_f32_32x32x16_bf16"
    def p1s_mfma(kc):
        o = S(); b = bf + 32 * (kc & 1)
        for st_ in range(4):
            first = kc == 0 and st_ == 0
            x = ar(16 * kc + 4 * st_, 4)
            o(f"{M32} {vr(accr,16)}, {x}, {vr(b+8*st_,4)}, {'0' if first else vr(accr,16)}")
            o(f"{M32} {vr(acci,16)}, {x}, {vr(b+8*st_+4,4)}, {'0' if first else vr(acci,16)}")
            if st_ == 0: o(f"{M32} {vr(duty,16)}, {vr(vsel,4)}, {vr(b,4)}, {'0' if first else vr(duty,16)}")
            if st_ == 1: o(f"{M32} {vr(duty,16)}, {vr(vsel+4,4)}, {vr(b+4,4)}, {vr(duty,16)}")
        return o
    gsg = S(); tk_sg = gsg(f"buffer_load_dwordx2 {vr(sg,2)}, v{vsg}, s[64:67], 0 offen sc1")
    gt2 = S()
    if P["touch"]:
        gt2(f"""s_mov_b32 exec_lo, 0x07ff00ff
        s_mov_b32 exec_hi, 0
        global_load_dword v{tb+1}, {vr(ta2,2)}, off
        s_mov_b64 exec, -1""")
    for kc in range(8):
        stamp(s, f"i{kc}")
        s.wait(vm=last(XB[kc]), ds=0)
        s.barrier()
        stamp(s, f"b{kc}")
        if kc <= 4: d = list(XB[kc + 3])
        elif kc == 5: d = W1[0] + W1[1]
        elif kc == 6: d = W1[2] + W1[3] + [gsg]
        else: d = W1[4] + W1[5]
        if kc == P["t2"] and P["touch"]: d = d + [gt2]
        if kc == 0: s.extend(weave(list(p1s_reads(0)) + FW[0], (d, 0, 1)))
        else: s.extend(weave(p1s_mfma(kc - 1), (list(p1s_reads(kc)), 0, 0.7), (d, 0, 1), (FW[kc] if kc < 7 else [], 0, 1)))
    s.wait(ds=0)
    V.free("Lr", "Li", "vlr", "vli", "vld", "kE", "kO", "p8", "lam")
    xe = v("xe", 4, 4); we = v("we", 4, 4); rstd = v("rstd", 2, 2)
    sc = S()
    sc.wait(vm=tk_sg)
    chk = S(); chk(f"v_cmp_ne_u32 vcc, s72, v{sg+1}\ns_cbranch_vccnz L_slow_st"); chk.label("L_back_st")
    sc.append(chk)
    slow.label("L_slow_st")
    slow("s_mov_b32 s85, 0x8000")
    slow.label("L_slow_st2")
    slow(f"""buffer_load_dwordx2 {vr(sg,2)}, v{vsg}, s[64:67], 0 offen sc1
    s_sub_u32 s85, s85, 1
    s_cmp_eq_u32 s85, 0
    s_waitcnt vmcnt(0)
    s_cbranch_scc1 L_back_st
    v_cmp_ne_u32 vcc, s72, v{sg+1}
    s_cbranch_vccnz L_slow_st2
    s_branch L_back_st""")
    sc(f"""v_and_b32 v{t0}, 0xffff0000, v{sg}
    v_rcp_f32 v{rstd}, v{t0}
    v_cmp_gt_u32 vcc, 32, v0
    ds_write_b32 v{vtr}, v{sg} offset:512
    ds_write_b32 v{vtr}, v{rstd}
    v_xor_b32 v{t1}, 0x8000, v{sg}
    v_and_b32 v{t1}, 0xffff, v{t1}
    v_lshl_or_b32 v{t1}, v{t1}, 16, v{t1}
    v_lshrrev_b32 v{t0}, 16, v{sg}
    v_cndmask_b32 v{xe}, 0, v{t1}, vcc
    v_cndmask_b32 v{xe+1}, 0, v{t0}, vcc
    v_mov_b32 v{xe+2}, 0
    v_mov_b32 v{xe+3}, 0
    v_mov_b32 v{we+1}, 0
    v_mov_b32 v{we+2}, 0
    v_mov_b32 v{we+3}, 0
    v_add_u32 v{t2}, {S0_BCS}, v{vcs}""")
    s.extend(weave(p1s_mfma(7), (W1[6] + W1[7], 0, 0.6), (list(sc), 0.3, 1)))
    V.free("vxr", "vbr", "vxd", "vbd", "vwd", "bf", "sg", "vsg", "vtr")
    if P["touch"]: V.free("tb", "ta", "ta2", "toff")
    stamp(s, "p1s")
    s(f"""s_mov_b32 exec_hi, 0
    ds_write_b32 v{t2}, v{duty}
    ds_write_b32 v{t2}, v{duty+1} offset:512
    s_mov_b64 exec, -1""")

    def dma_c(su):
        u = su >> 1; comp = u & 1; pi = u >> 1; dh = su & 1
        return group({0: f"s_add_u32 m0, s78, {RING[C_SL[su]]}\ns_lshl_b32 s81, s94, 7\ns_xor_b32 s81, s81, {128*pi}\ns_and_b32 s81, s81, 128\ns_add_u32 s81, s81, {32768*dh}"},
                     [f"buffer_load_dwordx4 v{vcd+q}, s[{52+4*comp}:{55+4*comp}], s81 offen offset:{1024*q} lds" for q in range(4)])
    def rotf(f): return f"s_add_u32 s81, s94, {f}\ns_sub_u32 s14, s81, 11\ns_cselect_b32 s81, s81, s14"
    def dma_w2(f):
        return group({0: f"s_add_u32 m0, s78, {RING[W2_SL[f]]}\n" + rotf(f) + "\ns_lshl_b32 s81, s81, 15"},
                     [f"buffer_load_dwordx4 v{v2d+q}, s[60:63], s81 offen offset:{1024*q} lds" for q in range(4)])
    CD = [dma_c(k) for k in range(8)]; WD = [dma_w2(k) for k in range(11)]
    def rd_c(su):
        u = su >> 1; comp = u & 1; pi = u >> 1; dh = su & 1
        o = S(); o.wait(vm=last(CD[su]))
        base = RING[C_SL[su]]; setb = 0
        if base >= 64 * KB: base -= 64 * KB; setb = 2
        for sp in range(2):
            stp = 2 * (2 * pi + sp) + comp
            for b in range(2):
                o(f"ds_read_b128 {ar(128+16*stp+4*(2*dh+b),4)}, v{vcr+setb+sp} offset:{base+2048*b}")
        return o
    def rd_w2(f):
        o = S(); o.wait(vm=last(WD[f]))
        base = RING[W2_SL[f]] - 48 * KB; setb = 0
        if base >= 64 * KB: base -= 64 * KB; setb = 4
        d = 16 * (f & 7)
        for n in range(4):
            o(f"ds_read_b64_tr_b16 {ar(d+4*n,2)}, v{v2r+setb+n} offset:{base}")
            o(f"ds_read_b64_tr_b16 {ar(d+4*n+2,2)}, v{v2r+setb+n} offset:{base+1024}")
        return o
    RC = [rd_c(k) for k in range(8)]; R2 = [rd_w2(k) for k in range(11)]
    def after(rd):
        w_ = S(); w_.wait(ds=rd[-1]); return w_
    accm = v("accm", 48, 4); wf = v("wf", 36, 4)
    def p1m_reads(n):
        kc, st_ = divmod(n, 4); b = wf + 12 * (n % 3)
        base = W1SLOT(kc) - (96 * KB if kc < 5 else 0)
        o = S()
        if n == 20:
            for k in range(4): o(f"v_subrev_u32 v{vwr+k}, {96*KB}, v{vwr+k}")
        for t in range(3):
            o(f"ds_read_b64_tr_b16 {vr(b+4*t,2)}, v{vwr+st_} offset:{base+64*t}")
            o(f"ds_read_b64_tr_b16 {vr(b+4*t+2,2)}, v{vwr+st_} offset:{base+64*t+768}")
        return o
    def p1m_mfma(n):
        kc, st_ = divmod(n, 4); b = wf + 12 * (n % 3)
        o = S(); x = ar(16 * kc + 4 * st_, 4)
        for t in range(3):
            o(f"{M32} {vr(accm+16*t,16)}, {vr(b+4*t,4)}, {x}, {'0' if n == 0 else vr(accm+16*t,16)}")
            if st_ == 0:
                o(f"{M32} {vr(duty,16)}, {vr(vsel+4*t,4)}, {vr(b+4*t,4)}, {'0' if (n == 0 and t == 0) else vr(duty,16)}")
        return o
    RD = [p1m_reads(n) for n in range(32)]

    UU = lambda i: (accr + i) if i % 2 == 0 else (acci + i - 1)
    rs16 = v("rs16", 16, 4); tp = v("tp", 8, 4); e = v("e", 2, 2); elo = v("elo", 2, 2); Q = v("Q", 2, 2)
    def cfma(o, dst, A, H, Uadd, tmp):
        o(f"v_pk_fma_f32 {vr(tmp,2)}, {vr(A,2)}, {vr(H,2)}, {vr(Uadd,2)} op_sel:[0,0,0] op_sel_hi:[0,1,1]")
        o(f"v_pk_fma_f32 {vr(dst,2)}, {vr(A,2)}, {vr(H,2)}, {vr(tmp,2)} op_sel:[1,1,0] op_sel_hi:[1,0,1] neg_lo:[1,0,0]")
    def cmul(o, dst, A, H, tmp):
        o(f"v_pk_mul_f32 {vr(tmp,2)}, {vr(A,2)}, {vr(H,2)} op_sel:[0,0] op_sel_hi:[0,1]")
        o(f"v_pk_fma_f32 {vr(dst,2)}, {vr(A,2)}, {vr(H,2)}, {vr(tmp,2)} op_sel:[1,1,0] op_sel_hi:[1,0,1] neg_lo:[1,0,0]")
    def split_cs(o, src4, dst):
        o(f"""v_add_f32 v{src4}, v{src4}, v{src4+1}
        v_add_f32 v{src4+2}, v{src4+2}, v{src4+3}
        v_add_f32 v{src4}, v{src4}, v{src4+2}
        v_cvt_pk_bf16_f32 v{src4+1}, v{src4}, v{src4}
        v_lshlrev_b32 v{src4+2}, 16, v{src4+1}
        v_sub_f32 v{src4}, v{src4}, v{src4+2}
        v_cvt_pk_bf16_f32 v{dst}, v{src4+2}, v{src4}""")
    A0 = S()
    A0(f"v_lshlrev_b32 v{t2}, 4, v{rho}\nv_add_u32 v{t2}, {S0_BCS}, v{t2}")
    A0(f"ds_read_b128 {vr(tp,4)}, v{t2}")
    k1 = A0(f"ds_read_b128 {vr(tp+4,4)}, v{t2} offset:512")
    A0(f"s_lshl_b32 s82, s3, 7\ns_add_u32 s82, s82, {S0_RSTD}\nv_lshl_add_u32 v{t3}, v{hh}, 6, s82")
    for i in range(4): k2 = A0(f"ds_read_b128 {vr(rs16+4*i,4)}, v{t3} offset:{16*i}")
    A0.extend(RD[0])
    A0.wait(ds=k1)
    split_cs(A0, tp, we)
    A0(f"{M32} {vr(accr,16)}, {vr(xe,4)}, {vr(we,4)}, {vr(accr,16)}")
    split_cs(A0, tp + 4, we)
    A0(f"{M32} {vr(acci,16)}, {vr(xe,4)}, {vr(we,4)}, {vr(acci,16)}")
    B1 = S()
    for pb in range(0, 16, 2):
        for pi_ in range(2):
            B1(f"v_pk_mul_f32 {vr(tp+2*pi_,2)}, {vr(PK,2)}, {vr(accr+pb,2)} op_sel:[0,{pi_}] op_sel_hi:[1,{pi_}]")
            B1(f"v_pk_fma_f32 {vr(tp+2*pi_,2)}, {vr(PK,2)}, {vr(acci+pb,2)}, {vr(tp+2*pi_,2)} op_sel:[1,{pi_},0] op_sel_hi:[0,{pi_},1] neg_hi:[1,0,0]")
        for pi_ in range(2):
            i = pb + pi_
            B1(f"v_pk_mul_f32 {vr(UU(i),2)}, {vr(tp+2*pi_,2)}, {vr(rs16+pb,2)} op_sel:[0,{pi_}] op_sel_hi:[1,{pi_}]")
            if i == 1: cfma(B1, e, PA, UU(0), UU(1), tp + 4)
            elif i > 1: cfma(B1, e, PA, e, UU(i), tp + 4)
    B1(f"""v_mov_b32 v{elo}, v{e}
    v_mov_b32 v{elo+1}, v{e+1}
    s_lshl_b32 s82, s3, 3
    s_add_u32 s82, s82, {S0_WT}
    v_permlane32_swap_b32 v{elo}, v{e}
    v_permlane32_swap_b32 v{elo+1}, v{e+1}
    v_lshl_add_u32 v{t2}, v{rho}, 5, s82""")
    cfma(B1, e, P16, elo, e, tp)
    kW = B1(f"ds_write_b64 v{t2}, {vr(e,2)}")
    B1(f"""v_lshlrev_b32 v{t2}, 5, v{rho}
    v_add_u32 v{t2}, {S0_WT}, v{t2}
    s_lshl_b32 s82, s39, 4
    s_add_u32 s82, s82, s38
    s_lshl_b32 s82, s82, 9
    s_add_u32 s82, s82, {WS_CAR}
    v_lshl_add_u32 v{t3}, v{rho}, 4, s82
    s_cmp_eq_u32 s3, 1
    s_cselect_b64 s[6:7], -1, 0
    s_cmp_eq_u32 s3, 2
    s_cselect_b64 s[8:9], -1, 0
    s_cmp_eq_u32 s3, 3
    s_cselect_b64 s[10:11], -1, 0
    s_lshl_b32 s82, s3, 3
    s_lshl_b32 s12, 0xff, s82""")
    B1.wait(ds=kW)
    C0 = S()
    C0(f"ds_read_b128 {vr(tp,4)}, v{t2}")
    k1 = C0(f"ds_read_b128 {vr(tp+4,4)}, v{t2} offset:16")
    C1 = S(); C1.wait(ds=k1)
    C1(f"v_cndmask_b32 v{Q}, 0, v{tp}, s[6:7]\nv_cndmask_b32 v{Q+1}, 0, v{tp+1}, s[6:7]")
    cfma(C1, tp + 2, P32, tp, tp + 2, e)
    C1(f"v_cndmask_b32 v{Q}, v{Q}, v{tp+2}, s[8:9]\nv_cndmask_b32 v{Q+1}, v{Q+1}, v{tp+3}, s[8:9]")
    cfma(C1, tp + 4, P32, tp + 2, tp + 4, e)
    C1(f"v_cndmask_b32 v{Q}, v{Q}, v{tp+4}, s[10:11]\nv_cndmask_b32 v{Q+1}, v{Q+1}, v{tp+5}, s[10:11]")
    cfma(C1, tp + 6, P32, tp + 4, tp + 6, e)
    pub = S()
    pub(f"""v_mov_b32 v{tp}, v{tp+6}
    v_mov_b32 v{tp+1}, s72
    v_mov_b32 v{tp+2}, v{tp+7}
    v_mov_b32 v{tp+3}, s72
    s_mov_b32 exec_lo, s12
    s_mov_b32 exec_hi, 0
    buffer_store_dwordx4 {vr(tp,4)}, v{t3}, s[64:67], 0 offen sc1
    s_mov_b64 exec, -1""")
    C1.append(pub)
    C1(f"v_cmp_gt_u32 vcc, 32, v0")
    cfma(C1, tp + 4, P16, Q, elo, e)
    C1(f"v_cndmask_b32 v{Q}, v{tp+4}, v{Q}, vcc\nv_cndmask_b32 v{Q+1}, v{tp+5}, v{Q+1}, vcc")

    fills = {n: [] for n in range(33)}
    owner = {}
    ev = sorted([(at, 1, f) for f, at in enumerate(P["w2at"])] + [(at, 0, f) for f, at in enumerate(P["r2at"])])
    done_r = set()
    for at, kind, f in ev:
        if kind == 0:
            assert at >= 4 * f + 4 and P["w2at"][f] + 2 < at
            fills[at].extend(list(R2[f])); done_r.add(f)
        else:
            sl = W2_SL[f]
            if sl in owner:
                assert owner[sl] in done_r, (f, sl)
                fills[at].append(after(R2[owner[sl]]))
            else: assert at >= {"A": 0, "B": 0, "C": 0, "D": 10, "E": 14, "F": 18}[sl]
            owner[sl] = f
            nxt = P["w2at"][f + 1] if f < 10 else 32
            for q in range(4): fills[min(at + q * (nxt - at) // 4, 31)].append(WD[f][q])
    s.wait(vm=last(W1[0]), ds=0)
    s.barrier()
    s.extend(A0)
    s.extend(RD[1])
    for n in range(32):
        kc, st_ = divmod(n, 4)
        if n == 1:
            s.wait(ds=k2); s.extend(B1); stamp(s, "pass1")
        if n == 1 or (st_ == 2 and 0 < kc < 7):
            s.wait(vm=last(W1[kc + 1]))
            s.barrier()
        stamp(s, f"m{n}")
        if n == 1: s.extend(C0)
        s.wait(ds=RD[n][-1])
        rd = list(RD[n + 2]) if n + 2 < 32 else []
        s.extend(weave(p1m_mfma(n), (rd, 0, 0.7), (fills[n], 0.3, 1)))
        if n == 1: s.extend(flat(C1)); stamp(s, "pub")
    stamp(s, "p1m")
    V.free("wf", "vwr", "v2d", "vsel", "PK", "P16", "P32", "elo")
    s(f"v_add_u32 v{t2}, {S2_WCS}, v{vcs}\ns_mov_b32 exec_hi, 0")
    for t in range(3): k1 = s(f"ds_write_b32 v{t2}, v{duty+t} offset:{512*t}")
    s("s_mov_b64 exec, -1")
    vxo = v("vxo"); xb = [v("xb", 2, 2) for _ in range(4)]; pst = v("pst", 4); vpg = v("vpg"); pg = [v("pg", 2, 2) for _ in range(4)]; vHs = v("vHs")
    s(f"""s_lshl_b32 s82, s75, 6
    s_lshr_b32 s83, s3, 1
    s_lshl_b32 s83, s83, 5
    s_add_u32 s82, s82, s83
    s_and_b32 s83, s3, 1
    s_lshl_b32 s83, s83, 3
    s_add_u32 s82, s82, s83
    v_add_u32 v{t0}, s82, v{l4}
    v_and_b32 v{t1}, 15, v0
    s_lshl_b32 s83, s74, 7
    v_lshl_add_u32 v{t1}, v{t1}, 3, s83
    v_lshl_add_u32 v{vxo}, v{t0}, 10, v{t1}
    v_lshlrev_b32 v{vpg}, 3, v{t0}
    v_add_u32 v{vpg}, {WS_STAT}, v{vpg}
    v_and_b32 v{t0}, 127, v{t0}
    v_lshlrev_b32 v{t0}, 2, v{t0}
    v_add_u32 v{t0}, {S0_PK}, v{t0}
    v_lshlrev_b32 v{t2}, 4, v{rho}
    v_add_u32 v{t2}, {S2_WCS}, v{t2}""")
    s.wait(ds=k1)
    s.barrier()
    kk = []
    for t in range(3): kk.append(s(f"ds_read_b128 {vr(rs16+4*t,4)}, v{t2} offset:{512*t}"))
    ROFF = (0, 16, 4, 20)
    if cfg == "A":
        for i in range(4): s(f"ds_read_b32 v{pst+i}, v{t0} offset:{4*ROFF[i]}")
    s(f"""s_mul_i32 s82, s76, 43
    s_add_u32 s82, s82, s77
    s_lshl_b32 s82, s82, 12
    s_and_b32 s83, s3, 1
    s_lshl_b32 s83, s83, 11
    s_add_u32 s82, s82, s83
    s_add_u32 s82, s82, {WS_Hm}
    v_lshrrev_b32 v{t1}, 4, v{rho}
    v_lshl_add_u32 v{vHs}, v{t1}, 10, s82
    v_lshl_add_u32 v{vHs}, v{hh}, 8, v{vHs}
    v_and_b32 v{t1}, 15, v0
    v_lshl_add_u32 v{vHs}, v{t1}, 4, v{vHs}
    s_cmp_lt_u32 s39, 11
    s_cselect_b32 s83, 8192, {OOB}
    s_movk_i32 s82, 4096""")
    for t in range(3):
        s.wait(ds=kk[t])
        split_cs(s, rs16 + 4 * t, we)
        s(f"v_mov_b32 v{we+1}, v{vb1+t}\ns_nop 1")
        s(f"{M32} {vr(accm+16*t,16)}, {vr(we,4)}, {vr(xe,4)}, {vr(accm+16*t,16)}")
    V.free("duty")
    stamp(s, "xk")
    hp = v("hp", 24, 4)
    act = S()
    for t in range(3):
        for k in range(8):
            a_ = accm + 16 * t + 2 * k
            act(f"""v_max_f32 v{a_}, 0, v{a_}
            v_max_f32 v{a_+1}, 0, v{a_+1}
            v_pk_mul_f32 {vr(a_,2)}, {vr(a_,2)}, {vr(rstd,2)} op_sel_hi:[1,0]
            v_pk_mul_f32 {vr(a_,2)}, {vr(a_,2)}, {vr(a_,2)}
            v_cvt_pk_bf16_f32 v{hp+8*t+k}, v{a_}, v{a_+1}""")
            if k & 3 == 3:
                tk_Hs = act(f"buffer_store_dwordx4 {vr(hp+8*t+k-3,4)}, v{vHs}, s[64:67], {('0','s82','s83')[t]} offen offset:{512*(k>>2)} sc1")
    cg = rs16
    G0 = S()
    G0(f"buffer_load_dwordx4 {vr(cg,4)}, v{vcg}, s[64:67], 0 offen sc1")
    tk_cg = G0(f"buffer_load_dwordx4 {vr(cg+4,4)}, v{vcg+1}, s[64:67], 0 offen offset:512 sc1")
    s.extend(weave(act, (list(G0), 0, 0.05), (list(R2[7]), 0.05, 0.4), (CD[0], 0.2, 0.9)))
    stamp(s, "Hst")
    V.free("accm", "xe", "we", "rstd", "vb1", "vcs", "vHs", "hp")
    def cg_check(o):
        o(f"""v_cmp_ne_u32 s[6:7], s72, v{cg+1}
        v_cmp_ne_u32 s[8:9], s72, v{cg+3}
        v_cmp_ne_u32 s[10:11], s72, v{cg+5}
        v_cmp_ne_u32 s[12:13], s72, v{cg+7}
        s_or_b64 s[6:7], s[6:7], s[8:9]
        s_and_b64 s[6:7], s[6:7], s[90:91]
        s_or_b64 s[10:11], s[10:11], s[12:13]
        s_and_b64 s[10:11], s[10:11], s[92:93]
        s_or_b64 s[6:7], s[6:7], s[10:11]""")
    D1 = S(); D1.wait(vm=tk_cg)
    chk = S(); cg_check(chk); chk("s_cbranch_scc1 L_slow_cg"); chk.label("L_back_cg"); D1.append(chk)
    slow.label("L_slow_cg")
    slow("s_mov_b32 s85, 0x8000")
    slow.label("L_slow_cg2")
    slow(f"""buffer_load_dwordx4 {vr(cg,4)}, v{vcg}, s[64:67], 0 offen sc1
    buffer_load_dwordx4 {vr(cg+4,4)}, v{vcg+1}, s[64:67], 0 offen offset:512 sc1
    s_sub_u32 s85, s85, 1
    s_cmp_eq_u32 s85, 0
    s_waitcnt vmcnt(0)
    s_cbranch_scc1 L_back_cg""")
    cg_check(slow)
    slow("s_cbranch_scc1 L_slow_cg2\ns_branch L_back_cg")
    D1(f"""v_mov_b32 v{cg+1}, v{cg+2}
    v_mov_b32 v{cg+5}, v{cg+6}
    s_lshl_b32 s82, s3, 4
    s_add_u32 s82, s82, {S1_CP}
    v_lshl_add_u32 v{t2}, v{rho}, 6, s82
    v_lshl_add_u32 v{t2}, v{hh}, 3, v{t2}""")
    cmul(D1, cg + 2, PW0, cg, tp)
    cfma(D1, cg + 2, PW1, cg + 4, cg + 2, tp)
    kP = D1(f"ds_write_b64 v{t2}, {vr(cg+2,2)}")
    vtw = v("vtw"); vtr2 = v("vtr2"); vhs = v("vhs"); vfl = v("vfl"); vtag = v("vtag")
    D1(f"""v_lshlrev_b32 v{t2}, 6, v{rho}
    v_add_u32 v{t2}, {S1_CP}, v{t2}
    s_add_u32 s82, s79, {S1_T}
    v_lshl_add_u32 v{vtw}, v{rho}, 6, s82
    v_lshl_add_u32 v{vtw}, v{hh}, 5, v{vtw}
    v_lshl_add_u32 v{t0}, v{l4}, 3, v{rp}
    v_lshl_add_u32 v{vtr2}, v{t0}, 6, s82
    v_and_b32 v{t0}, 1, v{cc}
    v_lshl_add_u32 v{vtr2}, v{t0}, 5, v{vtr2}
    v_lshrrev_b32 v{t0}, 1, v{cc}
    v_lshl_add_u32 v{vtr2}, v{t0}, 3, v{vtr2}
    s_lshl_b32 s82, s76, 4
    s_add_u32 s82, s82, s39
    s_lshl_b32 s82, s82, 1
    s_and_b32 s83, s3, 1
    s_add_u32 s84, s82, s83
    s_lshl_b32 s84, s84, 2
    s_add_u32 s84, s84, {WS_FLm}
    v_mov_b32 v{vfl}, s84
    v_mov_b32 v{vtag}, s72
    s_lshl_b32 s82, s82, 12
    s_lshl_b32 s83, s83, 11
    s_add_u32 s82, s82, s83
    s_add_u32 s82, s82, {WS_Hs}
    v_lshl_add_u32 v{vhs}, v0, 4, s82""")
    D1.wait(ds=kP)
    s.extend(weave(D1, (CD[1], 0.1, 0.9)))
    stamp(s, "d1")
    s.barrier()
    stamp(s, "d1b")
    E1 = S()
    for i in range(4): k1 = E1(f"ds_read_b128 {vr(cg+4*i,4)}, v{t2} offset:{16*i}")
    E1.wait(ds=k1)
    for a_, b_ in ((0, 2), (4, 6), (8, 10), (12, 14), (0, 4), (8, 12), (0, 8)):
        E1(f"v_pk_add_f32 {vr(cg+a_,2)}, {vr(cg+a_,2)}, {vr(cg+b_,2)}")
    cfma(E1, e, PG, cg, Q, tp)
    pk = rs16
    for i in range(16):
        cfma(E1, UU(i), PA, e if i == 0 else UU(i - 1), UU(i), tp)
        if i & 1:
            E1(f"v_cvt_pk_bf16_f32 v{pk+i//2}, v{UU(i-1)}, v{UU(i)}")
            E1(f"v_cvt_pk_bf16_f32 v{pk+8+i//2}, v{UU(i-1)+1}, v{UU(i)+1}")
    stamp(E1, "e1a")
    hf = accr; toks = []
    for comp in range(2):
        E1(f"ds_write_b128 v{vtw}, {vr(pk+8*comp,4)}\nds_write_b128 v{vtw}, {vr(pk+8*comp+4,4)} offset:16")
        for mb in range(2):
            E1(f"ds_read_b64_tr_b16 {vr(hf+8*comp+4*mb,2)}, v{vtr2} offset:{16*mb}")
            k1 = E1(f"ds_read_b64_tr_b16 {vr(hf+8*comp+4*mb+2,2)}, v{vtr2} offset:{16*mb+256}")
        toks.append(k1)
    stamp(E1, "e1b")
    E1("s_movk_i32 s82, 4096")
    for comp in range(2):
        E1.wait(ds=toks[comp])
        for mb in range(2):
            tk_hs = E1(f"buffer_store_dwordx4 {vr(hf+8*comp+4*mb,4)}, v{vhs}, s[64:67], {'s82' if comp else '0'} offen offset:{1024*mb} sc1")
    def flag(tok):
        o = S(); o.wait(vm=tok)
        o(f"""s_mov_b64 exec, 1
        buffer_store_dword v{vtag}, v{vfl}, s[64:67], 0 offen sc1
        s_mov_b64 exec, -1""")
        return o
    XL = []
    for i in range(4):
        a = S(); a(f"s_mov_b32 s81, {ROFF[i]*1024}"); tk_xb = a(f"buffer_load_dwordx2 {vr(xb[i],2)}, v{vxo}, s[40:43], s81 offen"); XL.append(a)
    def pgl(o):
        for i in range(4): tk = o(f"buffer_load_dwordx2 {vr(pg[i],2)}, v{vpg}, s[64:67], 0 offen offset:{8*ROFF[i]} sc1")
        return tk
    if cfg != "A":
        a = S(); tk_xb = pgl(a); XL += list(a)
    s.extend(weave(E1, (XL + CD[2], 0.0, 0.7), ([flag(tk_Hs)], 0.75, 0.75)))
    stamp(s, "hst")
    V.free("e", "Q", "vtw", "vtr2", "vhs", "PA", "PG", "PW0", "PW1", "vcg", "accr", "acci", "rs16", "tp")

    acc2 = v("acc2", 64, 4); NR = 6; ring = [v("ring", 16, 4) for _ in range(NR)]; base = v("base", 16, 4)
    vas = v("vas"); vam = v("vam")
    Bs = S()
    Bs(f"""s_lshl_b32 s82, s75, 17
    s_lshl_b32 s83, s3, 15
    s_add_u32 s82, s82, s83
    s_add_u32 s82, s82, {WS_Hs}
    v_lshl_add_u32 v{vas}, v0, 4, s82
    s_mul_i32 s82, s75, 43
    s_mul_i32 s83, s3, 11
    s_add_u32 s82, s82, s83
    s_lshl_b32 s82, s82, 12
    s_add_u32 s82, s82, {WS_Hm}
    v_lshl_add_u32 v{vam}, v0, 4, s82
    s_cmp_lt_u32 s3, 3
    s_cselect_b32 s84, 11, 10
    s_lshl_b32 s82, s75, 7
    s_lshl_b32 s83, s3, 5
    s_add_u32 s83, s83, s82
    s_add_u32 s83, s83, {WS_FLs}
    s_add_u32 s86, s36, s83
    s_addc_u32 s87, s37, 0
    s_lshl_b32 s83, s3, 5
    s_max_u32 s83, s83, 8
    s_sub_u32 s83, s83, 8
    s_add_u32 s83, s83, s82
    s_add_u32 s83, s83, {WS_FLm}
    s_add_u32 s88, s36, s83
    s_addc_u32 s89, s37, 0
    v_subrev_u32 v{vfl}, {WS_FLm-WS_FLs}, v{vfl}""")
    Bs2 = S(); i = 0
    while i < len(Bs):
        if i + 1 < len(Bs) and Bs[i + 1].text and Bs[i + 1].text.startswith(("s_addc", "s_cselect")): Bs2.append([Bs[i], Bs[i + 1]]); i += 2
        else: Bs2.append(Bs[i]); i += 1
    Bs = Bs2
    dk = ring[4]; u = ring[4] + 8
    for k in range(2):
        Bs(f"""v_lshlrev_b32 v{dk+2*k}, 16, v{vdk+k}
        v_and_b32 v{dk+2*k+1}, 0xffff0000, v{vdk+k}
        v_lshlrev_b32 v{dk+4+2*k}, 16, v{vb2+k}
        v_and_b32 v{dk+4+2*k+1}, 0xffff0000, v{vb2+k}""")
    Bs.wait(vm=tk_xb)
    if cfg != "A":
        def pg_check(o):
            o(f"""v_cmp_ne_u32 s[6:7], s72, v{pg[0]+1}
            v_cmp_ne_u32 s[8:9], s72, v{pg[1]+1}
            v_cmp_ne_u32 s[10:11], s72, v{pg[2]+1}
            v_cmp_ne_u32 s[12:13], s72, v{pg[3]+1}
            s_or_b64 s[6:7], s[6:7], s[8:9]
            s_or_b64 s[10:11], s[10:11], s[12:13]
            s_or_b64 s[6:7], s[6:7], s[10:11]""")
        chk = S(); pg_check(chk); chk("s_cbranch_scc1 L_slow_pg"); chk.label("L_back_pg"); Bs.append(chk)
        slow.label("L_slow_pg")
        slow("s_mov_b32 s85, 0x8000")
        slow.label("L_slow_pg2")
        pgl(slow)
        slow("s_sub_u32 s85, s85, 1\ns_cmp_eq_u32 s85, 0\ns_waitcnt vmcnt(0)\ns_cbranch_scc1 L_back_pg")
        pg_check(slow)
        slow("s_cbranch_scc1 L_slow_pg2\ns_branch L_back_pg")
    pv = (lambda i: pst + i) if cfg == "A" else (lambda i: pg[i])
    for i in range(4):
        Bs(f"""v_and_b32 v{u+1}, 0xffff0000, v{pv(i)}
        v_rcp_f32 v{u+1}, v{u+1}
        v_lshlrev_b32 v{u}, 16, v{pv(i)}""")
        for k in range(2):
            b_ = base + 4 * i + 2 * k
            Bs(f"""v_lshlrev_b32 v{b_}, 16, v{xb[i]+k}
            v_and_b32 v{b_+1}, 0xffff0000, v{xb[i]+k}
            v_pk_add_f32 {vr(u+2,2)}, {vr(b_,2)}, {vr(u,2)} op_sel_hi:[1,0] neg_lo:[0,1] neg_hi:[0,1]
            v_cvt_pk_bf16_f32 v{u+4}, v{u+2}, v{u+3}
            v_lshlrev_b32 v{u+2}, 16, v{u+4}
            v_and_b32 v{u+3}, 0xffff0000, v{u+4}
            v_pk_mul_f32 {vr(u+2,2)}, {vr(u+2,2)}, {vr(u,2)} op_sel:[0,1] op_sel_hi:[1,1]
            v_cvt_pk_bf16_f32 v{u+4}, v{u+2}, v{u+3}
            v_lshlrev_b32 v{u+2}, 16, v{u+4}
            v_and_b32 v{u+3}, 0xffff0000, v{u+4}
            v_pk_mul_f32 {vr(u+2,2)}, {vr(u+2,2)}, {vr(dk+2*k,2)}
            v_cvt_pk_bf16_f32 v{u+4}, v{u+2}, v{u+3}
            v_lshlrev_b32 v{u+2}, 16, v{u+4}
            v_and_b32 v{u+3}, 0xffff0000, v{u+4}
            v_pk_add_f32 {vr(b_,2)}, {vr(b_,2)}, {vr(u+2,2)}
            v_pk_add_f32 {vr(b_,2)}, {vr(b_,2)}, {vr(dk+4+2*k,2)}""")
    vrw = v("vrw", 4); vrr = v("vrr", 4)
    Bs(f"v_and_b32 v{t0}, 15, v0\nv_lshlrev_b32 v{t1}, 8, v{t0}\nv_add_u32 v{t1}, s78, v{t1}")
    for n in range(4):
        Bs(f"v_add_u32 v{t2}, {4*n}, v{l4}\nv_xor_b32 v{t2}, v{t2}, v{t0}\nv_lshl_add_u32 v{vrw+n}, v{t2}, 4, v{t1}")
    Bs("s_lshl_b32 s82, s3, 14")
    for i in range(4):
        Bs(f"v_add_u32 v{t2}, {4*i}, v{l4}\nv_xor_b32 v{t3}, v{t2}, v{t0}\nv_lshlrev_b32 v{t3}, 4, v{t3}\nv_lshl_add_u32 v{t3}, v{t2}, 8, v{t3}\nv_add_u32 v{vrr+i}, s82, v{t3}")
    Bs(f"v_lshlrev_b32 v{vxo}, 1, v{vxo}")
    dq = CD[3] + list(RC[0]) + CD[4] + list(RC[1]) + [after(RC[0])] + CD[5] + list(RC[2]) + [after(RC[1])] + CD[6] + [flag(tk_hs)] + list(RC[3]) + [after(RC[2])] + CD[7]
    s.extend(weave(Bs, (dq, 0, 1)))
    V.free("xb", "pst", "vdk", "vb2", "pg", "vpg")
    def poll(nm, ld, npairs):
        a = S()
        a.label(f"L_chk_{nm}")
        a.wait(ds=0)
        for i in range(npairs): a(f"s_cmp_eq_u64 s[{4+2*i}:{5+2*i}], s[72:73]\ns_cbranch_scc0 L_slow_{nm}")
        a.label(f"L_back_{nm}")
        slow.label(f"L_slow_{nm}")
        slow(f"""s_sub_u32 s85, s85, 1
        s_cmp_eq_u32 s85, 0
        s_cbranch_scc1 L_back_{nm}
        {ld}
        s_branch L_chk_{nm}""")
        return a
    ld_s = "s_load_dwordx8 s[4:11], s[86:87], 0 glc"; ld_m = "s_load_dwordx16 s[4:19], s[88:89], 0 glc"
    stamp(s, "bas")
    s("s_mov_b32 s85, 0x8000"); s(ld_m)
    s.extend(RC[4])
    s.extend(poll("m", ld_m, 5))
    stamp(s, "Hfl")
    def a2(i):
        d = ring[i % NR]
        so = "s81"
        if i < 11:
            va = vam; first = {0: rotf(i) + "\ns_cmp_eq_u32 s81, s84\ns_cselect_b32 s81, 0x40000, s81\ns_lshl_b32 s81, s81, 12"}
        else:
            va = vas; first = {0: f"s_lshl_b32 s81, s94, 14\ns_xor_b32 s81, s81, {4096*(i-11)}\ns_and_b32 s81, s81, 0x7000"}
        return group(first, [f"buffer_load_dwordx4 {vr(d+4*b,4)}, v{va}, s[64:67], {so} offen offset:{1024*b} sc1" for b in range(4)])
    A2 = [a2(i) for i in range(19)]
    def p2_mfma(i):
        o = S(); d = ring[i % NR]
        wb = 16 * (i & 7) if i < 11 else 128 + 16 * (i - 11)
        for b in range(4):
            for n in range(4):
                c_ = acc2 + 16 * b + 4 * n
                o(f"v_mfma_f32_16x16x32_bf16 {vr(c_,4)}, {ar(wb+4*n,4)}, {vr(d+4*b,4)}, {'0' if i == 0 else vr(c_,4)}")
        return o
    s.extend(flat(A2[0] + list(RC[5]) + A2[1] + list(RC[6]) + A2[2] + list(RC[7]) + A2[3]))
    late = {2: R2[8], 3: R2[9], 4: R2[10]}
    for i in range(19):
        f2 = []
        if i in late: f2 = list(late[i])
        if i == 5:
            a = S(); a.wait(ds=0); a("s_mov_b32 s85, 0x8000"); a(ld_s); f2 = [a]
        if i == 7:
            s.extend(poll("s", ld_s, 4)); stamp(s, "hfl")
        if i == 8: s.barrier()
        stamp(s, f"q{i}")
        if i == 0: s.wait(vm=last(A2[i]), ds=0)
        else: s.wait(vm=last(A2[i]))
        s.extend(weave(p2_mfma(i), (A2[i + 4] if i + 4 < 19 else [], 0, 0.9), (f2, 0.1, 1)))
    stamp(s, "q19")
    for b in range(4):
        for n in range(4):
            s(f"ds_write_b128 v{vrw+n}, {vr(acc2+16*b+4*n,4)} offset:{16384*b}")
    s.wait(ds=0)
    s.barrier()
    stamp(s, "red")
    kk = {}
    for i in range(4):
        for w_ in range(4):
            kk[i, w_] = s(f"ds_read_b128 {vr(ring[i]+4*w_,4)}, v{vrr+i} offset:{4096*w_}")
    for i in range(4):
        r_ = ring[i]; b_ = base + 4 * i
        s(f"s_mov_b32 s81, {ROFF[i]*2048}")
        s.wait(ds=kk[i, 3])
        for k in (0, 2):
            s(f"""v_pk_add_f32 {vr(r_+k,2)}, {vr(r_+k,2)}, {vr(r_+4+k,2)}
            v_pk_add_f32 {vr(r_+8+k,2)}, {vr(r_+8+k,2)}, {vr(r_+12+k,2)}
            v_pk_add_f32 {vr(b_+k,2)}, {vr(b_+k,2)}, {vr(r_+k,2)}
            v_pk_add_f32 {vr(b_+k,2)}, {vr(b_+k,2)}, {vr(r_+8+k,2)}""")
        s(f"buffer_store_dwordx4 {vr(b_,4)}, v{vxo}, s[68:71], s81 offen {P['outmod']}")
    s(f"""s_cmp_lg_u32 s2, 255
    s_cbranch_scc1 L_fin
    s_cmp_lg_u32 s3, 0
    s_cbranch_scc1 L_fin
    s_mov_b64 exec, 1
    v_mov_b32 v{t0}, 0
    buffer_store_dword v{vtag}, v{t0}, s[64:67], 0 offen sc1""")
    s.label("L_fin")
    if stamps and P.get("spin"):
        stamp(s, "ost")
        s.wait(vm=0)
        stamp(s, "end")
        s.wait(ds=0)
        s("s_sub_u32 s96, s96, s100\ns_add_u32 s100, s100, s96")
    elif stamps:
        stamp(s, "ost")
        s.wait(vm=0)
        stamp(s, "end")
        s.wait(ds=0)
        s(f"""s_lshl_b32 s81, s2, 2
        s_add_u32 s81, s81, s3
        s_lshl_b32 s81, s81, 6
        s_add_u32 s81, s81, {WS_TS}
        v_mov_b32 v{t0}, s81
        s_mov_b64 exec, 1""")
        for i, r_ in enumerate([100] + STREG[:nst[0]]):
            s(f"v_mov_b32 v{t1}, s{r_}\nglobal_store_dword v{t0}, v{t1}, s[36:37] offset:{4*i}")
    if P.get("spin"):
        s("s_cmp_lg_u32 s2, 0\ns_cbranch_scc1 L_end")
        s.label("L_spin")
        s(f"s_memrealtime s[4:5]\ns_waitcnt lgkmcnt(0)\ns_sub_u32 s4, s4, s100\ns_cmp_lt_u32 s4, {P['spin']}\ns_cbranch_scc1 L_spin")
    s.label("L_end")
    s("s_endpgm")
    s.extend(slow)
    rep = []
    lines, added = finalize(flat(s), rep)
    K = NAME + "_kernel"
    hdr = open("cdna_kernels/" + NAME + ".s.ref").read().split("; Override launch")[0]
    txt = hdr + ("; stamps: " + " ".join(["start"] + names) + "\n" if stamps else "") + "; @launch grid=(256,1,1) block=(256,1,1) lds=163840\n" + '.amdgcn_target "amdgcn-amd-amdhsa--gfx950"\n'
    txt += kernel_open(K) + "\n".join(("" if l.endswith(":") else "    ") + l for l in lines) + "\nL_code_end:\n"
    if P["touch"]: txt += f".set CODE_LIM, L_code_end - L_pc - 128\n"
    txt += kernel_desc(K)
    return txt, dict(nops=added, rep=rep, vpeak=V.peak, n=len(lines))

DEF = "xb0 b1 p1s pub p1m Hst hst Hfl q19 end".split()
if __name__ == "__main__":
    for a in sys.argv[1:]:
        parts = a.split(":", 2)
        P = {}
        if len(parts) > 1 and parts[1]:
            for kv in parts[1].split(","):
                k, val = kv.split("=")
                try: val = eval(val)
                except Exception: pass
                P[k] = val
        st = None
        if "ts" in parts[0]: st = parts[2].split() if len(parts) > 2 else DEF
        txt, info = gen(stamps=st, P=P)
        open(parts[0] + ".s", "w").write(txt)
        print(parts[0], info["nops"], info["vpeak"], info["n"])
```

```python
import sys
from strm import *
from asmlib import NAME, kernel_open, kernel_desc

WS_STAT = 0x1000
WS_CAR  = 0x8000
WS_FLs  = 0x30000
WS_FLm  = 0x31000
WS_Hm   = 0x100000
WS_Hs   = 0x800000
WS_TS   = 0x1000000
WS_REC  = 0x1000000
OOB     = 0x40000000
KB = 1024
def XSLOT(k): return 16 * KB * (k & 3)
def BSLOT(k): return 64 * KB + 8 * KB * (k & 3)
def W1SLOT(k): return (96 * KB + 12 * KB * k) if k < 5 else 12 * KB * (k - 5)
RING = {c: 16 * i * KB for i, c in enumerate("XYZABCDEF")}
W2_SL = "ABCDAEBFCDE"
C_SL = "XYZABXYZ"
S0 = 156 * KB
S0_RSTD = S0; S0_PK = S0 + 512; S0_BCS = S0 + 1024; S0_WT = S0 + 2048
S1_T = 144 * KB; S1_CP = S1_T + 8 * KB; S2_WCS = S1_CP + 2 * KB
LOG2E = 0x3fb8aa3b
DEFP = dict(amod="sc1", hmod="sc1", fmod="sc1", cfg="A", rotx="", rota=0, touch=True, t2=1, outmod="", w2at=[1, 4, 7, 10, 12, 15, 18, 20, 23, 26, 29], r2at=[10, 13, 16, 20, 22, 27, 29])

def flat(g):
    o = S()
    def put(x):
        if isinstance(x, list):
            for y in x: put(y)
        else: o.append(x)
    put(g)
    return o

def gen(stamps=None, P=None):
    P = dict(DEFP, **(P or {}))
    V = Alloc(256, 1)
    s = S(); slow = S()
    nst = [0]; names = []
    STREG = [96, 98, 20, 22, 24, 26, 28, 30, 32, 34]
    def stamp(o, name):
        if not stamps: return
        for kind, ins in (("", "s_memrealtime"), ("c:", "s_memtime")):
            if kind + name in stamps:
                r = STREG[nst[0]]; nst[0] += 1; names.append(kind + name)
                o(f"{ins} s[{r}:{r+1}]")
    def v(name, cnt=1, align=1): return V.alloc(name, cnt, align)
    def vr(b, n): return f"v[{b}:{b+n-1}]"
    def ar(b, n): return f"a[{b}:{b+n-1}]"
    def last(g): return g[-1][-1]

    s("s_cmp_ge_u32 s2, 256\ns_cbranch_scc1 L_end")
    s("s_load_dwordx16 s[4:19], s[0:1], 0\ns_load_dwordx16 s[20:35], s[0:1], 64\ns_load_dwordx2 s[36:37], s[0:1], 128")
    if stamps or P.get("spin"): s("s_memrealtime s[100:101]")
    t0 = v("t0"); t1 = v("t1"); t2 = v("t2"); t3 = v("t3")
    s(f"v_lshrrev_b32 v{t0}, 6, v0\nv_and_b32 v0, 63, v0")
    s(f"v_readfirstlane_b32 s3, v{t0}")
    cfg = P["cfg"]
    if cfg == "A":
        s("""s_and_b32 s38, s2, 7
        s_lshl_b32 s38, s38, 1
        s_bfe_u32 s39, s2, 0x10003
        s_add_u32 s38, s38, s39
        s_lshr_b32 s39, s2, 4
        s_and_b32 s74, s39, 7""")
    else:
        rb = 2 if cfg == "C" else 3
        s(f"""s_and_b32 s38, s2, {(16 >> rb) - 1}
        s_lshl_b32 s38, s38, {rb}
        s_bfe_u32 s39, s2, {(rb << 16) | 3:#x}
        s_add_u32 s38, s38, s39
        s_bfe_u32 s39, s2, {((rb - 1) << 16) | (4 - rb):#x}
        s_lshl_b32 s39, s39, {5 - rb}
        s_lshr_b32 s81, s2, {3 + rb}
        s_add_u32 s39, s39, s81
        s_lshr_b32 s74, s2, 5""")
    rx = P["rotx"]
    s("s_mov_b32 s95, 0")
    if "x" in rx: s("s_and_b32 s95, s2, 7")
    if "t" in rx: s("s_xor_b32 s81, s38, s39\ns_and_b32 s81, s81, 1\ns_lshl_b32 s81, s81, 2\ns_add_u32 s95, s95, s81")
    s("""s_lshl_b32 s95, s95, 7
    s_mul_i32 s77, s39, 3
    s_lshl_b32 s81, s39, 1
    s_add_u32 s81, s81, 11
    s_min_u32 s77, s77, s81
    s_lshl_b32 s78, s3, 12
    s_lshl_b32 s79, s3, 11""")
    rho = v("rho"); hh = v("hh"); lam = v("lam"); l4 = v("l4"); p8 = v("p8")
    s(f"""v_and_b32 v{rho}, 31, v0
    v_lshrrev_b32 v{hh}, 5, v0
    v_lshrrev_b32 v{lam}, 3, v0
    v_lshrrev_b32 v{l4}, 4, v0
    v_and_b32 v{p8}, 7, v0""")
    vcd = v("vcd", 4); v2r = v("v2r", 8); vcr = v("vcr", 4); rp = v("rp"); cc = v("cc")
    vdk = v("vdk", 2, 2); vb2 = v("vb2", 2, 2)
    vsr = v("vsr"); vsst = v("vsst")
    s(f"""s_lshl_b32 s81, s38, 7
    s_lshl_b32 s82, s39, 3
    s_add_u32 s82, s81, s82
    s_lshl_b32 s83, s3, 1
    s_add_u32 s82, s82, s83
    v_add_u32 v{vsst}, s82, v{hh}
    v_lshlrev_b32 v{t1}, 4, v{rho}
    v_lshl_add_u32 v{vsr}, v{vsst}, 10, v{t1}""")
    kE = v("kE"); kO = v("kO"); vxd = v("vxd", 4); vbd = v("vbd", 2)
    s(f"""v_xor_b32 v{kE}, v{p8}, v{l4}
    v_lshlrev_b32 v{kE}, 4, v{kE}
    v_xor_b32 v{kO}, 64, v{kE}
    s_lshl_b32 s82, s3, 5
    s_add_u32 s81, s81, s82
    v_and_b32 v{t0}, 3, v{lam}
    v_lshl_add_u32 v{t0}, v{hh}, 4, v{t0}
    v_add_u32 v{t0}, s81, v{t0}
    v_lshlrev_b32 v{t0}, 10, v{t0}
    v_add_u32 v{vxd}, v{t0}, v{kE}
    v_add_u32 v{t1}, v{t0}, v{kO}
    v_add_u32 v{vxd+1}, {3072}, v{t1}
    v_add_u32 v{vxd+2}, {2*3072}, v{vxd}
    v_add_u32 v{vxd+3}, {3*3072}, v{t1}
    s_lshl_b32 s81, s39, 5
    s_and_b32 s82, s3, 1
    s_lshl_b32 s82, s82, 4
    s_add_u32 s81, s81, s82
    v_add_u32 v{t0}, s81, v{lam}
    v_lshlrev_b32 v{t0}, 10, v{t0}
    v_add_u32 v{vbd}, v{t0}, v{kE}
    v_add_u32 v{t1}, v{t0}, v{kO}
    v_add_u32 v{vbd+1}, {7168}, v{t1}""")
    vp2 = v("vp2"); vf2 = v("vf2"); vn2 = v("vn2")
    s(f"""s_lshl_b32 s81, s39, 6
    v_lshl_add_u32 v{vp2}, v{rho}, 1, s81
    s_lshl_b32 s81, s77, 6
    v_lshl_add_u32 v{vf2}, v{rho}, 1, s81
    s_lshl_b32 s81, s74, 7
    v_and_b32 v{t0}, 15, v0
    v_lshl_add_u32 v{vn2}, v{t0}, 3, s81""")
    if P["touch"]:
        toff = v("toff"); ta = v("ta", 2, 2); tb = v("tb", 2); ta2 = v("ta2", 2, 2)
        s(f"""s_lshl_b32 s81, s2, 2
        s_add_u32 s81, s81, s3
        s_lshl_b32 s82, s81, 9
        s_mul_i32 s81, s81, 1376
        v_and_b32 v{t0}, 3, v0
        v_lshl_add_u32 v{t0}, v{t0}, 7, s82
        v_and_b32 v{t1}, 15, v0
        v_lshl_add_u32 v{t1}, v{t1}, 7, s81
        v_cmp_gt_u32 vcc, 16, v0
        s_getpc_b64 s[90:91]""")
        s.label("L_pc")
        s(f"""s_lshr_b32 s81, s2, 3
        s_lshl_b32 s81, s81, 2
        v_cndmask_b32 v{toff}, v{t1}, v{t0}, vcc
        s_add_u32 s81, s81, s3
        s_lshl_b32 s81, s81, 8
        v_and_b32 v{t1}, 1, v0
        v_lshl_add_u32 v{t1}, v{t1}, 7, s81
        v_min_u32 v{t1}, CODE_LIM, v{t1}
        v_cmp_gt_u32 vcc, 32, v0
        v_cmp_gt_u32 s[92:93], 4, v0
        v_cmp_gt_u32 s[88:89], 16, v0
        v_cndmask_b32 v{toff}, v{t1}, v{toff}, vcc""")
    s.wait(ds=0)
    stamp(s, "ka")
    def srd(o, b, p, n):
        o(f"s_mov_b32 s{b}, s{p}\ns_mov_b32 s{b+1}, s{p+1}\ns_mov_b32 s{b+2}, {n}\ns_mov_b32 s{b+3}, 0x20000")
    srd(s, 40, 4, 0x200000)
    vst = v("vst", 8, 4)
    s(f"buffer_load_dwordx4 {vr(vst,4)}, v{vsr}, s[40:43], 0 offen")
    tk_st = s(f"buffer_load_dwordx4 {vr(vst+4,4)}, v{vsr}, s[40:43], 0 offen offset:512")
    s("s_load_dword s72, s[36:37], 0")
    def touch_addr(o, dst, pa, pb, pc, code):
        for k in range(2):
            if code: o(f"v_mov_b32 v{dst+k}, s{90+k}\nv_mov_b32 v{t0}, s{pc+k}\nv_cndmask_b32 v{dst+k}, v{dst+k}, v{t0}, vcc")
            else: o(f"v_mov_b32 v{dst+k}, s{pc+k}")
            o(f"v_mov_b32 v{t0}, s{pb+k}\nv_cndmask_b32 v{dst+k}, v{dst+k}, v{t0}, s[88:89]")
            o(f"v_mov_b32 v{t0}, s{pa+k}\nv_cndmask_b32 v{dst+k}, v{dst+k}, v{t0}, s[92:93]")
        o(f"v_add_co_u32 v{dst}, vcc, v{dst}, v{toff}\nv_addc_co_u32 v{dst+1}, vcc, 0, v{dst+1}, vcc")
    if P["touch"]:
        touch_addr(s, ta, 10, 12, 24, True)
        s(f"""s_mov_b32 exec_lo, 0x07ff00ff
        s_mov_b32 exec_hi, 3
        global_load_dword v{tb}, {vr(ta,2)}, off
        s_mov_b64 exec, -1""")
    stamp(s, "tch")
    s("s_cmp_lt_u32 s3, 2\ns_cselect_b32 s44, s10, s12\ns_cselect_b32 s45, s11, s13\ns_mov_b32 s46, 0x80000\ns_mov_b32 s47, 0x20000")
    def group(first, loads):
        g = []
        for i, l in enumerate(loads):
            a = S()
            if i in first: a(first[i])
            a(l); g.append(a)
        return g
    def dma_xb(kc):
        return group({0: f"s_add_u32 m0, s78, {XSLOT(kc)}\ns_add_u32 s81, s95, {128*kc}\ns_and_b32 s81, s81, 0x380", 4: f"s_add_u32 m0, s79, {BSLOT(kc)}\ns_nop 0"},
                     [f"buffer_load_dwordx4 v{vxd+q}, s[40:43], s81 offen offset:{1024*q} lds" for q in range(4)] +
                     [f"buffer_load_dwordx4 v{vbd+q}, s[44:47], s81 offen offset:{1024*q} lds" for q in range(2)])
    XB = [dma_xb(k) for k in range(8)]
    vlr = v("vlr"); vli = v("vli"); vld = v("vld")
    vb1 = v("vb1", 3)
    s(f"global_load_ushort v{vlr}, v{vp2}, s[6:7]")
    s(f"global_load_ushort v{vli}, v{vp2}, s[8:9]")
    s(f"global_load_ushort v{vld}, v{vp2}, s[18:19]")
    srd(s, 84, 26, 2752)
    for t in range(3):
        s(f"buffer_load_ushort v{vb1+t}, v{vf2}, s[84:87], 0 offen offset:{64*t}")
    s(f"global_load_dwordx2 {vr(vdk,2)}, v{vn2}, s[20:21]")
    s(f"global_load_dwordx2 {vr(vb2,2)}, v{vn2}, s[30:31]")
    stamp(s, "sml")
    if P["touch"]: touch_addr(s, ta2, 14, 16, 28, False)
    srd(s, 48, 24, 512 * 2752); srd(s, 52, 14, 0x80000); srd(s, 56, 16, 0x80000); srd(s, 60, 28, 1376 * 1024)
    srd(s, 64, 36, WS_REC); srd(s, 68, 32, 0x400000)
    V.free("vp2", "vf2", "vn2", "vsr")
    vxr = v("vxr", 4); vbr = v("vbr", 4)
    s(f"""v_lshlrev_b32 v{vsst}, 3, v{vsst}
    v_add_u32 v{vsst}, {WS_STAT}, v{vsst}
    v_bfe_u32 v{t2}, v{rho}, 1, 3
    v_lshlrev_b32 v{t3}, 7, v{rho}""")
    for st in range(4):
        s(f"""s_add_u32 s82, s3, {st}
        s_and_b32 s82, s82, 3
        s_lshl_b32 s82, s82, 1
        v_add_u32 v{t0}, s82, v{hh}
        v_xor_b32 v{t0}, v{t0}, v{t2}
        v_lshl_add_u32 v{t0}, v{t0}, 4, v{t3}
        v_add_u32 v{vxr+st}, s78, v{t0}
        v_add_u32 v{vbr+st}, {64*KB}, v{t0}""")
    vsel = v("vsel", 12, 4)
    s(f"v_mov_b32 v{t0}, 0x3f803f80")
    for t in range(3):
        s(f"v_cmp_eq_u32 vcc, {t}, v{rho}\ns_nop 1\nv_cndmask_b32 v{vsel+4*t}, 0, v{t0}, vcc")
        for k in (1, 2, 3): s(f"v_mov_b32 v{vsel+4*t+k}, v{vsel+4*t}")
    if cfg == "A": s("s_lshr_b32 s75, s39, 3\ns_lshl_b32 s76, s38, 1\ns_add_u32 s75, s75, s76")
    else: s("s_and_b32 s75, s2, 7\ns_lshl_b32 s75, s75, 2\ns_bfe_u32 s76, s2, 0x20003\ns_add_u32 s75, s75, s76\ns_lshl_b32 s76, s38, 1")
    s("""s_lshr_b32 s82, s3, 1
    s_add_u32 s76, s76, s82
    s_mul_i32 s80, s3, 3072""")
    if P["rota"]: s("s_and_b32 s94, s74, 1\ns_mul_i32 s94, s94, 5")
    else: s("s_mov_b32 s94, 0")
    stamp(s, "adr")
    s.extend(flat(XB[0]))
    stamp(s, "xb0")

    st = S()
    xf = v("xf", 16, 2); acc = v("sacc", 2, 2); mean = v("mean", 2, 2)
    for i in range(8):
        st(f"v_lshlrev_b32 v{xf+2*i}, 16, v{vst+i}\nv_and_b32 v{xf+2*i+1}, 0xffff0000, v{vst+i}")
    st(f"v_pk_add_f32 {vr(acc,2)}, {vr(xf,2)}, {vr(xf+2,2)}")
    for i in range(2, 8): st(f"v_pk_add_f32 {vr(acc,2)}, {vr(acc,2)}, {vr(xf+2*i,2)}")
    def red32(o, r):
        o(f"v_add_f32 v{r}, v{r}, v{r+1}")
        for k in (8, 4, 2, 1): o(f"v_add_f32_dpp v{r}, v{r}, v{r} row_ror:{k} row_mask:0xf bank_mask:0xf")
        o(f"v_mov_b32 v{r+1}, v{r}\nv_permlane16_swap_b32 v{r}, v{r+1}\nv_add_f32 v{r}, v{r}, v{r+1}")
    red32(st, acc)
    st(f"v_mul_f32 v{mean}, 0x3b000000, v{acc}")
    for i in range(8): st(f"v_pk_add_f32 {vr(xf+2*i,2)}, {vr(xf+2*i,2)}, {vr(mean,2)} op_sel_hi:[1,0] neg_lo:[0,1] neg_hi:[0,1]")
    st(f"v_pk_mul_f32 {vr(acc,2)}, {vr(xf,2)}, {vr(xf,2)}")
    for i in range(1, 8): st(f"v_pk_fma_f32 {vr(acc,2)}, {vr(xf+2*i,2)}, {vr(xf+2*i,2)}, {vr(acc,2)}")
    red32(st, acc)
    st(f"""v_mul_f32 v{acc}, 0x3b000000, v{acc}
    v_cvt_pk_bf16_f32 v{acc}, v{acc}, v{acc}
    v_lshlrev_b32 v{acc}, 16, v{acc}
    v_add_f32 v{acc}, 0x3727c5ac, v{acc}
    v_cvt_pk_bf16_f32 v{acc}, v{acc}, v{acc}
    v_lshlrev_b32 v{acc}, 16, v{acc}
    v_sqrt_f32 v{acc}, v{acc}
    v_cvt_pk_bf16_f32 v{acc}, v{mean}, v{acc}""")
    s.wait(vm=tk_st)
    stamp(s, "stw")
    s.extend(weave(st, (XB[1], 0.0, 0.9)))
    s.wait(ds=0)
    s(f"""s_add_u32 s72, s72, 1
    s_mov_b32 s73, s72
    v_mov_b32 v{acc+1}, s72
    s_mov_b32 exec_lo, 1
    s_mov_b32 exec_hi, 1
    buffer_store_dwordx2 {vr(acc,2)}, v{vsst}, s[64:67], 0 offen sc1
    s_mov_b64 exec, -1""")
    stamp(s, "sts")
    V.free("xf", "sacc", "mean", "vst", "vsst")
    s.extend(flat(XB[2]))
    stamp(s, "pro")

    fw = S()
    vwd = v("vwd", 3); vwr = v("vwr", 4)
    fw("s_mul_i32 s82, s3, 192\ns_lshl_b32 s83, s77, 6\ns_mov_b32 s88, 0x15555556\ns_movk_i32 s89, 2752")
    for i in range(3):
        fw(f"""v_add_u32 v{t0}, s82, v0
        v_add_u32 v{t0}, {64*i}, v{t0}
        v_mul_hi_u32 v{t1}, v{t0}, s88
        v_mul_u32_u24 v{t2}, 12, v{t1}
        v_sub_u32 v{t2}, v{t0}, v{t2}
        v_lshlrev_b32 v{t2}, 4, v{t2}
        v_mul_lo_u32 v{t1}, v{t1}, s89
        v_add3_u32 v{vwd+i}, v{t1}, v{t2}, s83""")
        if i: fw(f"v_subrev_u32 v{vwd+i}, {1024*i}, v{vwd+i}")
    vtr = v("vtr"); vsg = v("vsg"); sg = v("sg", 2, 2)
    fw(f"""v_bfe_u32 v{t0}, v{rho}, 2, 1
    v_lshlrev_b32 v{t0}, 4, v{t0}
    v_lshrrev_b32 v{t1}, 3, v{rho}
    v_lshl_add_u32 v{t0}, v{t1}, 2, v{t0}
    v_and_b32 v{t1}, 3, v{rho}
    v_add_u32 v{t0}, v{t0}, v{t1}
    s_lshl_b32 s82, s3, 5
    v_add_u32 v{vtr}, s82, v{t0}
    s_lshl_b32 s82, s38, 10
    s_add_u32 s82, s82, {WS_STAT}
    v_lshl_add_u32 v{vsg}, v{vtr}, 3, s82
    v_lshlrev_b32 v{vtr}, 2, v{vtr}
    v_add_u32 v{vtr}, {S0_RSTD}, v{vtr}""")
    fw(f"""v_bfe_u32 v{rp}, v0, 2, 2
    v_and_b32 v{cc}, 3, v0
    v_lshl_add_u32 v{t0}, v{hh}, 3, v{rp}
    v_mul_u32_u24 v{t0}, 192, v{t0}
    v_and_b32 v{t1}, 1, v{l4}
    v_lshl_add_u32 v{t0}, v{t1}, 5, v{t0}
    v_lshl_add_u32 v{t0}, v{cc}, 3, v{t0}""")
    for st_ in range(4):
        fw(f"""s_add_u32 s82, s3, {st_}
        s_and_b32 s82, s82, 3
        s_mul_i32 s82, s82, 3072
        s_add_u32 s82, s82, {96*KB}
        v_add_u32 v{vwr+st_}, s82, v{t0}""")
    v2d = v("v2d", 4)
    fw(f"""s_lshl_b32 s82, s74, 6
    v_add_u32 v{t0}, s82, v{lam}
    v_lshlrev_b32 v{t0}, 10, v{t0}
    s_lshl_b32 s82, s3, 8
    v_add_u32 v{t0}, s82, v{t0}
    v_add_u32 v{vcd}, v{t0}, v{kE}
    v_add_u32 v{t1}, v{t0}, v{kO}
    v_add_u32 v{vcd+1}, 7168, v{t1}
    v_add_u32 v{vcd+2}, {2*7168}, v{vcd}
    v_add_u32 v{vcd+3}, {3*7168}, v{t1}
    s_mul_i32 s82, s3, 352
    v_add_u32 v{t0}, s82, v{lam}
    v_lshlrev_b32 v{t0}, 10, v{t0}
    v_lshlrev_b32 v{t1}, 1, v{l4}
    v_xor_b32 v{t1}, v{p8}, v{t1}
    v_lshl_add_u32 v{t0}, v{t1}, 4, v{t0}
    s_lshl_b32 s82, s74, 7
    v_add_u32 v{v2d}, s82, v{t0}""")
    for q in (1, 2, 3): fw(f"v_add_u32 v{v2d+q}, {7168*q}, v{v2d}")
    Lr = v("Lr"); Li = v("Li"); PA = v("PA", 2, 2); PK = v("PK", 2, 2); P16 = v("P16", 2, 2); P32 = v("P32", 2, 2)
    PG = v("PG", 2, 2); PW0 = v("PW0", 2, 2); PW1 = v("PW1", 2, 2)
    fw(f"""v_lshlrev_b32 v{vlr}, 16, v{vlr}
    v_lshlrev_b32 v{vli}, 16, v{vli}
    v_lshlrev_b32 v{vld}, 16, v{vld}
    v_mul_f32 v{vld}, {LOG2E:#x}, v{vld}
    v_exp_f32 v{vld}, v{vld}
    s_nop 0
    v_cvt_pk_bf16_f32 v{vld}, v{vld}, v{vld}
    v_lshlrev_b32 v{vld}, 16, v{vld}
    v_mul_f32 v{Lr}, v{vld}, v{vlr}
    v_mul_f32 v{Li}, v{vld}, v{vli}
    v_mul_f32 v{Lr}, {LOG2E:#x}, v{Lr}
    v_mul_f32 v{Li}, 0.15915494, v{Li}""")
    def cpow(dst, n):
        fw(f"""v_mul_f32 v{t0}, {n}, v{Lr}
        v_mul_f32 v{t1}, {n}, v{Li}
        v_exp_f32 v{t0}, v{t0}
        v_fract_f32 v{t1}, v{t1}
        v_cos_f32 v{dst}, v{t1}
        v_sin_f32 v{dst+1}, v{t1}
        v_mul_f32 v{dst}, v{t0}, v{dst}
        v_mul_f32 v{dst+1}, -v{t0}, v{dst+1}""")
    cpow(PA, "1.0")
    fw(f"""v_add_f32 v{t0}, -1.0, v{PA}
    v_mul_f32 v{t1}, v{vlr}, v{vlr}
    v_fmac_f32 v{t1}, v{vli}, v{vli}
    v_rcp_f32 v{t1}, v{t1}
    v_mul_f32 v{PK}, v{t0}, v{vlr}
    v_fma_f32 v{PK}, -v{PA+1}, v{vli}, v{PK}
    v_mul_f32 v{PK+1}, v{t0}, v{vli}
    v_fmac_f32 v{PK+1}, v{PA+1}, v{vlr}
    v_add_f32 v{t1}, v{t1}, v{t1}
    v_mul_f32 v{PK}, v{PK}, v{t1}
    v_mul_f32 v{PK+1}, v{PK+1}, v{t1}""")
    cpow(P16, "0x41800000"); cpow(P32, "0x42000000")
    fw(f"s_lshl_b32 s83, s3, 5\nv_lshl_add_u32 v{t2}, v{hh}, 4, s83\nv_cvt_f32_u32 v{t2}, v{t2}")
    cpow(PG, f"v{t2}")
    vcg = v("vcg", 2)
    fw(f"""s_lshl_b32 s83, s3, 2
    v_lshl_add_u32 v{t3}, v{hh}, 1, s83
    s_lshl_b32 s82, s39, 13
    s_add_u32 s82, s82, {WS_CAR}
    v_lshlrev_b32 v{t2}, 4, v{rho}
    v_lshl_add_u32 v{t2}, v{t3}, 9, v{t2}
    v_add_u32 v{t2}, s82, v{t2}
    v_mov_b32 v{t1}, {OOB}
    v_cmp_gt_u32 s[90:91], s38, v{t3}
    v_add_u32 v{t0}, 1, v{t3}
    v_cmp_gt_u32 s[92:93], s38, v{t0}
    v_cndmask_b32 v{vcg}, v{t1}, v{t2}, s[90:91]
    v_sub_u32 v{t3}, s38, v{t0}
    v_cndmask_b32 v{vcg+1}, v{t1}, v{t2}, s[92:93]
    v_max_i32 v{t2}, 0, v{t3}
    v_lshlrev_b32 v{t2}, 7, v{t2}
    v_cvt_f32_u32 v{t2}, v{t2}""")
    cpow(PW0, f"v{t2}")
    fw(f"v_add_u32 v{t3}, -1, v{t3}\nv_max_i32 v{t2}, 0, v{t3}\nv_lshlrev_b32 v{t2}, 7, v{t2}\nv_cvt_f32_u32 v{t2}, v{t2}")
    cpow(PW1, f"v{t2}")
    vcs = v("vcs")
    fw(f"""s_lshl_b32 s82, s3, 2
    v_lshl_add_u32 v{vcs}, v{rho}, 4, s82
    v_and_b32 v{t0}, 15, v0
    v_lshrrev_b32 v{t1}, 1, v{t0}
    v_xor_b32 v{t1}, v{t1}, v{l4}
    v_lshlrev_b32 v{t0}, 7, v{t0}
    v_add_u32 v{t0}, s78, v{t0}
    v_lshl_add_u32 v{vcr}, v{t1}, 4, v{t0}
    v_xor_b32 v{vcr+1}, 64, v{vcr}
    v_add_u32 v{vcr+2}, {64*KB}, v{vcr}
    v_add_u32 v{vcr+3}, {64*KB}, v{vcr+1}
    s_add_u32 s82, s78, {48*KB}
    v_and_b32 v{t0}, 1, v{l4}
    v_lshrrev_b32 v{t1}, 1, v{rp}
    v_lshl_add_u32 v{t1}, v{t0}, 1, v{t1}
    v_lshl_add_u32 v{t0}, v{t0}, 2, v{rp}
    v_lshl_add_u32 v{t0}, v{hh}, 4, v{t0}
    v_lshlrev_b32 v{t0}, 7, v{t0}
    v_lshl_add_u32 v{t0}, v{cc}, 3, v{t0}
    v_add_u32 v{t0}, s82, v{t0}""")
    for n in range(4):
        fw(f"""v_xor_b32 v{t2}, {n}, v{t1}
        v_lshl_add_u32 v{v2r+n}, v{t2}, 5, v{t0}
        v_add_u32 v{v2r+4+n}, {64*KB}, v{v2r+n}""")
    FW = chop(list(fw), 7)

    accr = v("accr", 16, 4); acci = v("acci", 16, 4); duty = v("duty", 16, 4)
    bf = v("bf", 64, 4)
    def dma_w1(kc):
        return group({0: f"s_add_u32 m0, s80, {W1SLOT(kc)}\ns_add_u32 s81, s95, {128*kc}\ns_and_b32 s81, s81, 0x380\ns_mulk_i32 s81, 1376"},
                     [f"buffer_load_dwordx4 v{vwd+i}, s[48:51], s81 offen offset:{1024*i} lds" for i in range(3)])
    W1 = [dma_w1(k) for k in range(8)]
    def p1s_reads(kc):
        o = S(); b = bf + 32 * (kc & 1)
        for st_ in range(4):
            o(f"ds_read_b128 {ar(16*kc+4*st_,4)}, v{vxr+st_} offset:{XSLOT(kc)}")
            o(f"ds_read_b128 {vr(b+8*st_,4)}, v{vbr+st_} offset:{BSLOT(kc)-64*KB}")
            o(f"ds_read_b128 {vr(b+8*st_+4,4)}, v{vbr+st_} offset:{BSLOT(kc)-64*KB+4096}")
        return o
    M32 = "v_mfma_f32_32x32x16_bf16"
    def p1s_mfma(kc):
        o = S(); b = bf + 32 * (kc & 1)
        for st_ in range(4):
            first = kc == 0 and st_ == 0
            x = ar(16 * kc + 4 * st_, 4)
            o(f"{M32} {vr(accr,16)}, {x}, {vr(b+8*st_,4)}, {'0' if first else vr(accr,16)}")
            o(f"{M32} {vr(acci,16)}, {x}, {vr(b+8*st_+4,4)}, {'0' if first else vr(acci,16)}")
            if st_ == 0: o(f"{M32} {vr(duty,16)}, {vr(vsel,4)}, {vr(b,4)}, {'0' if first else vr(duty,16)}")
            if st_ == 1: o(f"{M32} {vr(duty,16)}, {vr(vsel+4,4)}, {vr(b+4,4)}, {vr(duty,16)}")
        return o
    gsg = S(); tk_sg = gsg(f"buffer_load_dwordx2 {vr(sg,2)}, v{vsg}, s[64:67], 0 offen sc1")
    gt2 = S()
    if P["touch"]:
        gt2(f"""s_mov_b32 exec_lo, 0x07ff00ff
        s_mov_b32 exec_hi, 0
        global_load_dword v{tb+1}, {vr(ta2,2)}, off
        s_mov_b64 exec, -1""")
    for kc in range(8):
        stamp(s, f"i{kc}")
        s.wait(vm=last(XB[kc]), ds=0)
        s.barrier()
        stamp(s, f"b{kc}")
        if kc <= 4: d = list(XB[kc + 3])
        elif kc == 5: d = W1[0] + W1[1]
        elif kc == 6: d = W1[2] + W1[3] + [gsg]
        else: d = W1[4] + W1[5]
        if kc == P["t2"] and P["touch"]: d = d + [gt2]
        if kc == 0: s.extend(weave(list(p1s_reads(0)) + FW[0], (d, 0, 1)))
        else: s.extend(weave(p1s_mfma(kc - 1), (list(p1s_reads(kc)), 0, 0.7), (d, 0, 1), (FW[kc] if kc < 7 else [], 0, 1)))
    s.wait(ds=0)
    V.free("Lr", "Li", "vlr", "vli", "vld", "kE", "kO", "p8", "lam")
    xe = v("xe", 4, 4); we = v("we", 4, 4); rstd = v("rstd", 2, 2)
    sc = S()
    sc.wait(vm=tk_sg)
    chk = S(); chk(f"v_cmp_ne_u32 vcc, s72, v{sg+1}\ns_cbranch_vccnz L_slow_st"); chk.label("L_back_st")
    sc.append(chk)
    slow.label("L_slow_st")
    slow("s_mov_b32 s85, 0x8000")
    slow.label("L_slow_st2")
    slow(f"""buffer_load_dwordx2 {vr(sg,2)}, v{vsg}, s[64:67], 0 offen sc1
    s_sub_u32 s85, s85, 1
    s_cmp_eq_u32 s85, 0
    s_waitcnt vmcnt(0)
    s_cbranch_scc1 L_back_st
    v_cmp_ne_u32 vcc, s72, v{sg+1}
    s_cbranch_vccnz L_slow_st2
    s_branch L_back_st""")
    sc(f"""v_and_b32 v{t0}, 0xffff0000, v{sg}
    v_rcp_f32 v{rstd}, v{t0}
    v_cmp_gt_u32 vcc, 32, v0
    ds_write_b32 v{vtr}, v{sg} offset:512
    ds_write_b32 v{vtr}, v{rstd}
    v_xor_b32 v{t1}, 0x8000, v{sg}
    v_and_b32 v{t1}, 0xffff, v{t1}
    v_lshl_or_b32 v{t1}, v{t1}, 16, v{t1}
    v_lshrrev_b32 v{t0}, 16, v{sg}
    v_cndmask_b32 v{xe}, 0, v{t1}, vcc
    v_cndmask_b32 v{xe+1}, 0, v{t0}, vcc
    v_mov_b32 v{xe+2}, 0
    v_mov_b32 v{xe+3}, 0
    v_mov_b32 v{we+1}, 0
    v_mov_b32 v{we+2}, 0
    v_mov_b32 v{we+3}, 0
    v_add_u32 v{t2}, {S0_BCS}, v{vcs}""")
    s.extend(weave(p1s_mfma(7), (W1[6] + W1[7], 0, 0.6), (list(sc), 0.3, 1)))
    V.free("vxr", "vbr", "vxd", "vbd", "vwd", "bf", "sg", "vsg", "vtr")
    if P["touch"]: V.free("tb", "ta", "ta2", "toff")
    stamp(s, "p1s")
    s(f"""s_mov_b32 exec_hi, 0
    ds_write_b32 v{t2}, v{duty}
    ds_write_b32 v{t2}, v{duty+1} offset:512
    s_mov_b64 exec, -1""")

    def dma_c(su):
        u = su >> 1; comp = u & 1; pi = u >> 1; dh = su & 1
        return group({0: f"s_add_u32 m0, s78, {RING[C_SL[su]]}\ns_lshl_b32 s81, s94, 7\ns_xor_b32 s81, s81, {128*pi}\ns_and_b32 s81, s81, 128\ns_add_u32 s81, s81, {32768*dh}"},
                     [f"buffer_load_dwordx4 v{vcd+q}, s[{52+4*comp}:{55+4*comp}], s81 offen offset:{1024*q} lds" for q in range(4)])
    def rotf(f): return f"s_add_u32 s81, s94, {f}\ns_sub_u32 s14, s81, 11\ns_cselect_b32 s81, s81, s14"
    def dma_w2(f):
        return group({0: f"s_add_u32 m0, s78, {RING[W2_SL[f]]}\n" + rotf(f) + "\ns_lshl_b32 s81, s81, 15"},
                     [f"buffer_load_dwordx4 v{v2d+q}, s[60:63], s81 offen offset:{1024*q} lds" for q in range(4)])
    CD = [dma_c(k) for k in range(8)]; WD = [dma_w2(k) for k in range(11)]
    def rd_c(su):
        u = su >> 1; comp = u & 1; pi = u >> 1; dh = su & 1
        o = S(); o.wait(vm=last(CD[su]))
        base = RING[C_SL[su]]; setb = 0
        if base >= 64 * KB: base -= 64 * KB; setb = 2
        for sp in range(2):
            stp = 2 * (2 * pi + sp) + comp
            for b in range(2):
                o(f"ds_read_b128 {ar(128+16*stp+4*(2*dh+b),4)}, v{vcr+setb+sp} offset:{base+2048*b}")
        return o
    def rd_w2(f):
        o = S(); o.wait(vm=last(WD[f]))
        base = RING[W2_SL[f]] - 48 * KB; setb = 0
        if base >= 64 * KB: base -= 64 * KB; setb = 4
        d = 16 * (f & 7)
        for n in range(4):
            o(f"ds_read_b64_tr_b16 {ar(d+4*n,2)}, v{v2r+setb+n} offset:{base}")
            o(f"ds_read_b64_tr_b16 {ar(d+4*n+2,2)}, v{v2r+setb+n} offset:{base+1024}")
        return o
    RC = [rd_c(k) for k in range(8)]; R2 = [rd_w2(k) for k in range(11)]
    def after(rd):
        w_ = S(); w_.wait(ds=rd[-1]); return w_
    accm = v("accm", 48, 4); wf = v("wf", 36, 4)
    def p1m_reads(n):
        kc, st_ = divmod(n, 4); b = wf + 12 * (n % 3)
        base = W1SLOT(kc) - (96 * KB if kc < 5 else 0)
        o = S()
        if n == 20:
            for k in range(4): o(f"v_subrev_u32 v{vwr+k}, {96*KB}, v{vwr+k}")
        for t in range(3):
            o(f"ds_read_b64_tr_b16 {vr(b+4*t,2)}, v{vwr+st_} offset:{base+64*t}")
            o(f"ds_read_b64_tr_b16 {vr(b+4*t+2,2)}, v{vwr+st_} offset:{base+64*t+768}")
        return o
    def p1m_mfma(n):
        kc, st_ = divmod(n, 4); b = wf + 12 * (n % 3)
        o = S(); x = ar(16 * kc + 4 * st_, 4)
        for t in range(3):
            o(f"{M32} {vr(accm+16*t,16)}, {vr(b+4*t,4)}, {x}, {'0' if n == 0 else vr(accm+16*t,16)}")
            if st_ == 0:
                o(f"{M32} {vr(duty,16)}, {vr(vsel+4*t,4)}, {vr(b+4*t,4)}, {'0' if (n == 0 and t == 0) else vr(duty,16)}")
        return o
    RD = [p1m_reads(n) for n in range(32)]

    UU = lambda i: (accr + i) if i % 2 == 0 else (acci + i - 1)
    rs16 = v("rs16", 16, 4); tp = v("tp", 8, 4); e = v("e", 2, 2); elo = v("elo", 2, 2); Q = v("Q", 2, 2)
    def cfma(o, dst, A, H, Uadd, tmp):
        o(f"v_pk_fma_f32 {vr(tmp,2)}, {vr(A,2)}, {vr(H,2)}, {vr(Uadd,2)} op_sel:[0,0,0] op_sel_hi:[0,1,1]")
        o(f"v_pk_fma_f32 {vr(dst,2)}, {vr(A,2)}, {vr(H,2)}, {vr(tmp,2)} op_sel:[1,1,0] op_sel_hi:[1,0,1] neg_lo:[1,0,0]")
    def cmul(o, dst, A, H, tmp):
        o(f"v_pk_mul_f32 {vr(tmp,2)}, {vr(A,2)}, {vr(H,2)} op_sel:[0,0] op_sel_hi:[0,1]")
        o(f"v_pk_fma_f32 {vr(dst,2)}, {vr(A,2)}, {vr(H,2)}, {vr(tmp,2)} op_sel:[1,1,0] op_sel_hi:[1,0,1] neg_lo:[1,0,0]")
    def split_cs(o, src4, dst):
        o(f"""v_add_f32 v{src4}, v{src4}, v{src4+1}
        v_add_f32 v{src4+2}, v{src4+2}, v{src4+3}
        v_add_f32 v{src4}, v{src4}, v{src4+2}
        v_cvt_pk_bf16_f32 v{src4+1}, v{src4}, v{src4}
        v_lshlrev_b32 v{src4+2}, 16, v{src4+1}
        v_sub_f32 v{src4}, v{src4}, v{src4+2}
        v_cvt_pk_bf16_f32 v{dst}, v{src4+2}, v{src4}""")
    A0 = S()
    A0(f"v_lshlrev_b32 v{t2}, 4, v{rho}\nv_add_u32 v{t2}, {S0_BCS}, v{t2}")
    A0(f"ds_read_b128 {vr(tp,4)}, v{t2}")
    k1 = A0(f"ds_read_b128 {vr(tp+4,4)}, v{t2} offset:512")
    A0(f"s_lshl_b32 s82, s3, 7\ns_add_u32 s82, s82, {S0_RSTD}\nv_lshl_add_u32 v{t3}, v{hh}, 6, s82")
    for i in range(4): k2 = A0(f"ds_read_b128 {vr(rs16+4*i,4)}, v{t3} offset:{16*i}")
    A0.extend(RD[0])
    A0.wait(ds=k1)
    split_cs(A0, tp, we)
    A0(f"{M32} {vr(accr,16)}, {vr(xe,4)}, {vr(we,4)}, {vr(accr,16)}")
    split_cs(A0, tp + 4, we)
    A0(f"{M32} {vr(acci,16)}, {vr(xe,4)}, {vr(we,4)}, {vr(acci,16)}")
    B1 = S()
    for pb in range(0, 16, 2):
        for pi_ in range(2):
            B1(f"v_pk_mul_f32 {vr(tp+2*pi_,2)}, {vr(PK,2)}, {vr(accr+pb,2)} op_sel:[0,{pi_}] op_sel_hi:[1,{pi_}]")
            B1(f"v_pk_fma_f32 {vr(tp+2*pi_,2)}, {vr(PK,2)}, {vr(acci+pb,2)}, {vr(tp+2*pi_,2)} op_sel:[1,{pi_},0] op_sel_hi:[0,{pi_},1] neg_hi:[1,0,0]")
        for pi_ in range(2):
            i = pb + pi_
            B1(f"v_pk_mul_f32 {vr(UU(i),2)}, {vr(tp+2*pi_,2)}, {vr(rs16+pb,2)} op_sel:[0,{pi_}] op_sel_hi:[1,{pi_}]")
            if i == 1: cfma(B1, e, PA, UU(0), UU(1), tp + 4)
            elif i > 1: cfma(B1, e, PA, e, UU(i), tp + 4)
    B1(f"""v_mov_b32 v{elo}, v{e}
    v_mov_b32 v{elo+1}, v{e+1}
    s_lshl_b32 s82, s3, 3
    s_add_u32 s82, s82, {S0_WT}
    v_permlane32_swap_b32 v{elo}, v{e}
    v_permlane32_swap_b32 v{elo+1}, v{e+1}
    v_lshl_add_u32 v{t2}, v{rho}, 5, s82""")
    cfma(B1, e, P16, elo, e, tp)
    kW = B1(f"ds_write_b64 v{t2}, {vr(e,2)}")
    B1(f"""v_lshlrev_b32 v{t2}, 5, v{rho}
    v_add_u32 v{t2}, {S0_WT}, v{t2}
    s_lshl_b32 s82, s39, 4
    s_add_u32 s82, s82, s38
    s_lshl_b32 s82, s82, 9
    s_add_u32 s82, s82, {WS_CAR}
    v_lshl_add_u32 v{t3}, v{rho}, 4, s82
    s_cmp_eq_u32 s3, 1
    s_cselect_b64 s[6:7], -1, 0
    s_cmp_eq_u32 s3, 2
    s_cselect_b64 s[8:9], -1, 0
    s_cmp_eq_u32 s3, 3
    s_cselect_b64 s[10:11], -1, 0
    s_lshl_b32 s82, s3, 3
    s_lshl_b32 s12, 0xff, s82""")
    B1.wait(ds=kW)
    C0 = S()
    C0(f"ds_read_b128 {vr(tp,4)}, v{t2}")
    k1 = C0(f"ds_read_b128 {vr(tp+4,4)}, v{t2} offset:16")
    C1 = S(); C1.wait(ds=k1)
    C1(f"v_cndmask_b32 v{Q}, 0, v{tp}, s[6:7]\nv_cndmask_b32 v{Q+1}, 0, v{tp+1}, s[6:7]")
    cfma(C1, tp + 2, P32, tp, tp + 2, e)
    C1(f"v_cndmask_b32 v{Q}, v{Q}, v{tp+2}, s[8:9]\nv_cndmask_b32 v{Q+1}, v{Q+1}, v{tp+3}, s[8:9]")
    cfma(C1, tp + 4, P32, tp + 2, tp + 4, e)
    C1(f"v_cndmask_b32 v{Q}, v{Q}, v{tp+4}, s[10:11]\nv_cndmask_b32 v{Q+1}, v{Q+1}, v{tp+5}, s[10:11]")
    cfma(C1, tp + 6, P32, tp + 4, tp + 6, e)
    pub = S()
    pub(f"""v_mov_b32 v{tp}, v{tp+6}
    v_mov_b32 v{tp+1}, s72
    v_mov_b32 v{tp+2}, v{tp+7}
    v_mov_b32 v{tp+3}, s72
    s_mov_b32 exec_lo, s12
    s_mov_b32 exec_hi, 0
    buffer_store_dwordx4 {vr(tp,4)}, v{t3}, s[64:67], 0 offen sc1
    s_mov_b64 exec, -1""")
    C1.append(pub)
    C1(f"v_cmp_gt_u32 vcc, 32, v0")
    cfma(C1, tp + 4, P16, Q, elo, e)
    C1(f"v_cndmask_b32 v{Q}, v{tp+4}, v{Q}, vcc\nv_cndmask_b32 v{Q+1}, v{tp+5}, v{Q+1}, vcc")

    fills = {n: [] for n in range(33)}
    owner = {}
    ev = sorted([(at, 1, f) for f, at in enumerate(P["w2at"])] + [(at, 0, f) for f, at in enumerate(P["r2at"])])
    done_r = set()
    for at, kind, f in ev:
        if kind == 0:
            assert at >= 4 * f + 4 and P["w2at"][f] + 2 < at
            fills[at].extend(list(R2[f])); done_r.add(f)
        else:
            sl = W2_SL[f]
            if sl in owner:
                assert owner[sl] in done_r, (f, sl)
                fills[at].append(after(R2[owner[sl]]))
            else: assert at >= {"A": 0, "B": 0, "C": 0, "D": 10, "E": 14, "F": 18}[sl]
            owner[sl] = f
            nxt = P["w2at"][f + 1] if f < 10 else 32
            for q in range(4): fills[min(at + q * (nxt - at) // 4, 31)].append(WD[f][q])
    s.wait(vm=last(W1[0]), ds=0)
    s.barrier()
    s.extend(A0)
    s.extend(RD[1])
    for n in range(32):
        kc, st_ = divmod(n, 4)
        if n == 1:
            s.wait(ds=k2); s.extend(B1); stamp(s, "pass1")
        if n == 1 or (st_ == 2 and 0 < kc < 7):
            s.wait(vm=last(W1[kc + 1]))
            s.barrier()
        stamp(s, f"m{n}")
        if n == 1: s.extend(C0)
        s.wait(ds=RD[n][-1])
        rd = list(RD[n + 2]) if n + 2 < 32 else []
        s.extend(weave(p1m_mfma(n), (rd, 0, 0.7), (fills[n], 0.3, 1)))
        if n == 1: s.extend(flat(C1)); stamp(s, "pub")
    stamp(s, "p1m")
    V.free("wf", "vwr", "v2d", "vsel", "PK", "P16", "P32", "elo")
    s(f"v_add_u32 v{t2}, {S2_WCS}, v{vcs}\ns_mov_b32 exec_hi, 0")
    for t in range(3): k1 = s(f"ds_write_b32 v{t2}, v{duty+t} offset:{512*t}")
    s("s_mov_b64 exec, -1")
    vxo = v("vxo"); xb = [v("xb", 2, 2) for _ in range(4)]; pst = v("pst", 4); vpg = v("vpg"); pg = [v("pg", 2, 2) for _ in range(4)]; vHs = v("vHs")
    s(f"""s_lshl_b32 s82, s75, 6
    s_lshr_b32 s83, s3, 1
    s_lshl_b32 s83, s83, 5
    s_add_u32 s82, s82, s83
    s_and_b32 s83, s3, 1
    s_lshl_b32 s83, s83, 3
    s_add_u32 s82, s82, s83
    v_add_u32 v{t0}, s82, v{l4}
    v_and_b32 v{t1}, 15, v0
    s_lshl_b32 s83, s74, 7
    v_lshl_add_u32 v{t1}, v{t1}, 3, s83
    v_lshl_add_u32 v{vxo}, v{t0}, 10, v{t1}
    v_lshlrev_b32 v{vpg}, 3, v{t0}
    v_add_u32 v{vpg}, {WS_STAT}, v{vpg}
    v_and_b32 v{t0}, 127, v{t0}
    v_lshlrev_b32 v{t0}, 2, v{t0}
    v_add_u32 v{t0}, {S0_PK}, v{t0}
    v_lshlrev_b32 v{t2}, 4, v{rho}
    v_add_u32 v{t2}, {S2_WCS}, v{t2}""")
    s.wait(ds=k1)
    s.barrier()
    kk = []
    for t in range(3): kk.append(s(f"ds_read_b128 {vr(rs16+4*t,4)}, v{t2} offset:{512*t}"))
    ROFF = (0, 16, 4, 20)
    if cfg == "A":
        for i in range(4): s(f"ds_read_b32 v{pst+i}, v{t0} offset:{4*ROFF[i]}")
    s(f"""s_mul_i32 s82, s76, 43
    s_add_u32 s82, s82, s77
    s_lshl_b32 s82, s82, 12
    s_and_b32 s83, s3, 1
    s_lshl_b32 s83, s83, 11
    s_add_u32 s82, s82, s83
    s_add_u32 s82, s82, {WS_Hm}
    v_lshrrev_b32 v{t1}, 4, v{rho}
    v_lshl_add_u32 v{vHs}, v{t1}, 10, s82
    v_lshl_add_u32 v{vHs}, v{hh}, 8, v{vHs}
    v_and_b32 v{t1}, 15, v0
    v_lshl_add_u32 v{vHs}, v{t1}, 4, v{vHs}
    s_cmp_lt_u32 s39, 11
    s_cselect_b32 s83, 8192, {OOB}
    s_movk_i32 s82, 4096""")
    for t in range(3):
        s.wait(ds=kk[t])
        split_cs(s, rs16 + 4 * t, we)
        s(f"v_mov_b32 v{we+1}, v{vb1+t}\ns_nop 1")
        s(f"{M32} {vr(accm+16*t,16)}, {vr(we,4)}, {vr(xe,4)}, {vr(accm+16*t,16)}")
    V.free("duty")
    stamp(s, "xk")
    hp = v("hp", 24, 4)
    act = S()
    for t in range(3):
        for k in range(8):
            a_ = accm + 16 * t + 2 * k
            act(f"""v_max_f32 v{a_}, 0, v{a_}
            v_max_f32 v{a_+1}, 0, v{a_+1}
            v_pk_mul_f32 {vr(a_,2)}, {vr(a_,2)}, {vr(rstd,2)} op_sel_hi:[1,0]
            v_pk_mul_f32 {vr(a_,2)}, {vr(a_,2)}, {vr(a_,2)}
            v_cvt_pk_bf16_f32 v{hp+8*t+k}, v{a_}, v{a_+1}""")
            if k & 3 == 3:
                tk_Hs = act(f"buffer_store_dwordx4 {vr(hp+8*t+k-3,4)}, v{vHs}, s[64:67], {('0','s82','s83')[t]} offen offset:{512*(k>>2)} {P['hmod']}")
    cg = rs16
    G0 = S()
    G0(f"buffer_load_dwordx4 {vr(cg,4)}, v{vcg}, s[64:67], 0 offen sc1")
    tk_cg = G0(f"buffer_load_dwordx4 {vr(cg+4,4)}, v{vcg+1}, s[64:67], 0 offen offset:512 sc1")
    s.extend(weave(act, (list(G0), 0, 0.05), (list(R2[7]), 0.05, 0.4), (CD[0], 0.2, 0.9)))
    stamp(s, "Hst")
    V.free("accm", "xe", "we", "rstd", "vb1", "vcs", "vHs", "hp")
    def cg_check(o):
        o(f"""v_cmp_ne_u32 s[6:7], s72, v{cg+1}
        v_cmp_ne_u32 s[8:9], s72, v{cg+3}
        v_cmp_ne_u32 s[10:11], s72, v{cg+5}
        v_cmp_ne_u32 s[12:13], s72, v{cg+7}
        s_or_b64 s[6:7], s[6:7], s[8:9]
        s_and_b64 s[6:7], s[6:7], s[90:91]
        s_or_b64 s[10:11], s[10:11], s[12:13]
        s_and_b64 s[10:11], s[10:11], s[92:93]
        s_or_b64 s[6:7], s[6:7], s[10:11]""")
    D1 = S(); D1.wait(vm=tk_cg)
    chk = S(); cg_check(chk); chk("s_cbranch_scc1 L_slow_cg"); chk.label("L_back_cg"); D1.append(chk)
    slow.label("L_slow_cg")
    slow("s_mov_b32 s85, 0x8000")
    slow.label("L_slow_cg2")
    slow(f"""buffer_load_dwordx4 {vr(cg,4)}, v{vcg}, s[64:67], 0 offen sc1
    buffer_load_dwordx4 {vr(cg+4,4)}, v{vcg+1}, s[64:67], 0 offen offset:512 sc1
    s_sub_u32 s85, s85, 1
    s_cmp_eq_u32 s85, 0
    s_waitcnt vmcnt(0)
    s_cbranch_scc1 L_back_cg""")
    cg_check(slow)
    slow("s_cbranch_scc1 L_slow_cg2\ns_branch L_back_cg")
    D1(f"""v_mov_b32 v{cg+1}, v{cg+2}
    v_mov_b32 v{cg+5}, v{cg+6}
    s_lshl_b32 s82, s3, 4
    s_add_u32 s82, s82, {S1_CP}
    v_lshl_add_u32 v{t2}, v{rho}, 6, s82
    v_lshl_add_u32 v{t2}, v{hh}, 3, v{t2}""")
    cmul(D1, cg + 2, PW0, cg, tp)
    cfma(D1, cg + 2, PW1, cg + 4, cg + 2, tp)
    kP = D1(f"ds_write_b64 v{t2}, {vr(cg+2,2)}")
    vtw = v("vtw"); vtr2 = v("vtr2"); vhs = v("vhs"); vfl = v("vfl"); vtag = v("vtag")
    D1(f"""v_lshlrev_b32 v{t2}, 6, v{rho}
    v_add_u32 v{t2}, {S1_CP}, v{t2}
    s_add_u32 s82, s79, {S1_T}
    v_lshl_add_u32 v{vtw}, v{rho}, 6, s82
    v_lshl_add_u32 v{vtw}, v{hh}, 5, v{vtw}
    v_lshl_add_u32 v{t0}, v{l4}, 3, v{rp}
    v_lshl_add_u32 v{vtr2}, v{t0}, 6, s82
    v_and_b32 v{t0}, 1, v{cc}
    v_lshl_add_u32 v{vtr2}, v{t0}, 5, v{vtr2}
    v_lshrrev_b32 v{t0}, 1, v{cc}
    v_lshl_add_u32 v{vtr2}, v{t0}, 3, v{vtr2}
    s_lshl_b32 s82, s76, 4
    s_add_u32 s82, s82, s39
    s_lshl_b32 s82, s82, 1
    s_and_b32 s83, s3, 1
    s_add_u32 s84, s82, s83
    s_lshl_b32 s84, s84, 2
    s_add_u32 s84, s84, {WS_FLm}
    v_mov_b32 v{vfl}, s84
    v_mov_b32 v{vtag}, s72
    s_lshl_b32 s82, s82, 12
    s_lshl_b32 s83, s83, 11
    s_add_u32 s82, s82, s83
    s_add_u32 s82, s82, {WS_Hs}
    v_lshl_add_u32 v{vhs}, v0, 4, s82""")
    D1.wait(ds=kP)
    s.extend(weave(D1, (CD[1], 0.1, 0.9)))
    stamp(s, "d1")
    s.barrier()
    stamp(s, "d1b")
    E1 = S()
    for i in range(4): k1 = E1(f"ds_read_b128 {vr(cg+4*i,4)}, v{t2} offset:{16*i}")
    E1.wait(ds=k1)
    for a_, b_ in ((0, 2), (4, 6), (8, 10), (12, 14), (0, 4), (8, 12), (0, 8)):
        E1(f"v_pk_add_f32 {vr(cg+a_,2)}, {vr(cg+a_,2)}, {vr(cg+b_,2)}")
    cfma(E1, e, PG, cg, Q, tp)
    pk = rs16
    for i in range(16):
        cfma(E1, UU(i), PA, e if i == 0 else UU(i - 1), UU(i), tp)
        if i & 1:
            E1(f"v_cvt_pk_bf16_f32 v{pk+i//2}, v{UU(i-1)}, v{UU(i)}")
            E1(f"v_cvt_pk_bf16_f32 v{pk+8+i//2}, v{UU(i-1)+1}, v{UU(i)+1}")
    stamp(E1, "e1a")
    hf = accr; toks = []
    for comp in range(2):
        E1(f"ds_write_b128 v{vtw}, {vr(pk+8*comp,4)}\nds_write_b128 v{vtw}, {vr(pk+8*comp+4,4)} offset:16")
        for mb in range(2):
            E1(f"ds_read_b64_tr_b16 {vr(hf+8*comp+4*mb,2)}, v{vtr2} offset:{16*mb}")
            k1 = E1(f"ds_read_b64_tr_b16 {vr(hf+8*comp+4*mb+2,2)}, v{vtr2} offset:{16*mb+256}")
        toks.append(k1)
    stamp(E1, "e1b")
    E1("s_movk_i32 s82, 4096")
    for comp in range(2):
        E1.wait(ds=toks[comp])
        for mb in range(2):
            tk_hs = E1(f"buffer_store_dwordx4 {vr(hf+8*comp+4*mb,4)}, v{vhs}, s[64:67], {'s82' if comp else '0'} offen offset:{1024*mb} {P['hmod']}")
    def flag(tok):
        o = S(); o.wait(vm=tok)
        o(f"""s_mov_b64 exec, 1
        buffer_store_dword v{vtag}, v{vfl}, s[64:67], 0 offen {P['fmod']}
        s_mov_b64 exec, -1""")
        return o
    XL = []
    for i in range(4):
        a = S(); a(f"s_mov_b32 s81, {ROFF[i]*1024}"); tk_xb = a(f"buffer_load_dwordx2 {vr(xb[i],2)}, v{vxo}, s[40:43], s81 offen"); XL.append(a)
    def pgl(o):
        for i in range(4): tk = o(f"buffer_load_dwordx2 {vr(pg[i],2)}, v{vpg}, s[64:67], 0 offen offset:{8*ROFF[i]} sc1")
        return tk
    if cfg != "A":
        a = S(); tk_xb = pgl(a); XL += list(a)
    s.extend(weave(E1, (XL + CD[2], 0.0, 0.7), ([flag(tk_Hs)], 0.75, 0.75)))
    stamp(s, "hst")
    V.free("e", "Q", "vtw", "vtr2", "vhs", "PA", "PG", "PW0", "PW1", "vcg", "accr", "acci", "rs16", "tp")

    acc2 = v("acc2", 64, 4); NR = 6; ring = [v("ring", 16, 4) for _ in range(NR)]; base = v("base", 16, 4)
    vas = v("vas"); vam = v("vam")
    Bs = S()
    Bs(f"""s_lshl_b32 s82, s75, 17
    s_lshl_b32 s83, s3, 15
    s_add_u32 s82, s82, s83
    s_add_u32 s82, s82, {WS_Hs}
    v_lshl_add_u32 v{vas}, v0, 4, s82
    s_mul_i32 s82, s75, 43
    s_mul_i32 s83, s3, 11
    s_add_u32 s82, s82, s83
    s_lshl_b32 s82, s82, 12
    s_add_u32 s82, s82, {WS_Hm}
    v_lshl_add_u32 v{vam}, v0, 4, s82
    s_cmp_lt_u32 s3, 3
    s_cselect_b32 s84, 11, 10
    s_lshl_b32 s82, s75, 7
    s_lshl_b32 s83, s3, 5
    s_add_u32 s83, s83, s82
    s_add_u32 s83, s83, {WS_FLs}
    s_add_u32 s86, s36, s83
    s_addc_u32 s87, s37, 0
    s_lshl_b32 s83, s3, 5
    s_max_u32 s83, s83, 8
    s_sub_u32 s83, s83, 8
    s_add_u32 s83, s83, s82
    s_add_u32 s83, s83, {WS_FLm}
    s_add_u32 s88, s36, s83
    s_addc_u32 s89, s37, 0
    v_subrev_u32 v{vfl}, {WS_FLm-WS_FLs}, v{vfl}""")
    Bs2 = S(); i = 0
    while i < len(Bs):
        if i + 1 < len(Bs) and Bs[i + 1].text and Bs[i + 1].text.startswith(("s_addc", "s_cselect")): Bs2.append([Bs[i], Bs[i + 1]]); i += 2
        else: Bs2.append(Bs[i]); i += 1
    Bs = Bs2
    dk = ring[4]; u = ring[4] + 8
    for k in range(2):
        Bs(f"""v_lshlrev_b32 v{dk+2*k}, 16, v{vdk+k}
        v_and_b32 v{dk+2*k+1}, 0xffff0000, v{vdk+k}
        v_lshlrev_b32 v{dk+4+2*k}, 16, v{vb2+k}
        v_and_b32 v{dk+4+2*k+1}, 0xffff0000, v{vb2+k}""")
    Bs.wait(vm=tk_xb)
    if cfg != "A":
        def pg_check(o):
            o(f"""v_cmp_ne_u32 s[6:7], s72, v{pg[0]+1}
            v_cmp_ne_u32 s[8:9], s72, v{pg[1]+1}
            v_cmp_ne_u32 s[10:11], s72, v{pg[2]+1}
            v_cmp_ne_u32 s[12:13], s72, v{pg[3]+1}
            s_or_b64 s[6:7], s[6:7], s[8:9]
            s_or_b64 s[10:11], s[10:11], s[12:13]
            s_or_b64 s[6:7], s[6:7], s[10:11]""")
        chk = S(); pg_check(chk); chk("s_cbranch_scc1 L_slow_pg"); chk.label("L_back_pg"); Bs.append(chk)
        slow.label("L_slow_pg")
        slow("s_mov_b32 s85, 0x8000")
        slow.label("L_slow_pg2")
        pgl(slow)
        slow("s_sub_u32 s85, s85, 1\ns_cmp_eq_u32 s85, 0\ns_waitcnt vmcnt(0)\ns_cbranch_scc1 L_back_pg")
        pg_check(slow)
        slow("s_cbranch_scc1 L_slow_pg2\ns_branch L_back_pg")
    pv = (lambda i: pst + i) if cfg == "A" else (lambda i: pg[i])
    for i in range(4):
        Bs(f"""v_and_b32 v{u+1}, 0xffff0000, v{pv(i)}
        v_rcp_f32 v{u+1}, v{u+1}
        v_lshlrev_b32 v{u}, 16, v{pv(i)}""")
        for k in range(2):
            b_ = base + 4 * i + 2 * k
            Bs(f"""v_lshlrev_b32 v{b_}, 16, v{xb[i]+k}
            v_and_b32 v{b_+1}, 0xffff0000, v{xb[i]+k}
            v_pk_add_f32 {vr(u+2,2)}, {vr(b_,2)}, {vr(u,2)} op_sel_hi:[1,0] neg_lo:[0,1] neg_hi:[0,1]
            v_cvt_pk_bf16_f32 v{u+4}, v{u+2}, v{u+3}
            v_lshlrev_b32 v{u+2}, 16, v{u+4}
            v_and_b32 v{u+3}, 0xffff0000, v{u+4}
            v_pk_mul_f32 {vr(u+2,2)}, {vr(u+2,2)}, {vr(u,2)} op_sel:[0,1] op_sel_hi:[1,1]
            v_cvt_pk_bf16_f32 v{u+4}, v{u+2}, v{u+3}
            v_lshlrev_b32 v{u+2}, 16, v{u+4}
            v_and_b32 v{u+3}, 0xffff0000, v{u+4}
            v_pk_mul_f32 {vr(u+2,2)}, {vr(u+2,2)}, {vr(dk+2*k,2)}
            v_cvt_pk_bf16_f32 v{u+4}, v{u+2}, v{u+3}
            v_lshlrev_b32 v{u+2}, 16, v{u+4}
            v_and_b32 v{u+3}, 0xffff0000, v{u+4}
            v_pk_add_f32 {vr(b_,2)}, {vr(b_,2)}, {vr(u+2,2)}
            v_pk_add_f32 {vr(b_,2)}, {vr(b_,2)}, {vr(dk+4+2*k,2)}""")
    vrw = v("vrw", 4); vrr = v("vrr", 4)
    Bs(f"v_and_b32 v{t0}, 15, v0\nv_lshlrev_b32 v{t1}, 8, v{t0}\nv_add_u32 v{t1}, s78, v{t1}")
    for n in range(4):
        Bs(f"v_add_u32 v{t2}, {4*n}, v{l4}\nv_xor_b32 v{t2}, v{t2}, v{t0}\nv_lshl_add_u32 v{vrw+n}, v{t2}, 4, v{t1}")
    Bs("s_lshl_b32 s82, s3, 14")
    for i in range(4):
        Bs(f"v_add_u32 v{t2}, {4*i}, v{l4}\nv_xor_b32 v{t3}, v{t2}, v{t0}\nv_lshlrev_b32 v{t3}, 4, v{t3}\nv_lshl_add_u32 v{t3}, v{t2}, 8, v{t3}\nv_add_u32 v{vrr+i}, s82, v{t3}")
    Bs(f"v_lshlrev_b32 v{vxo}, 1, v{vxo}")
    dq = CD[3] + list(RC[0]) + CD[4] + list(RC[1]) + [after(RC[0])] + CD[5] + list(RC[2]) + [after(RC[1])] + CD[6] + [flag(tk_hs)] + list(RC[3]) + [after(RC[2])] + CD[7]
    s.extend(weave(Bs, (dq, 0, 1)))
    V.free("xb", "pst", "vdk", "vb2", "pg", "vpg")
    def poll(nm, ld, npairs):
        a = S()
        a.label(f"L_chk_{nm}")
        a.wait(ds=0)
        for i in range(npairs): a(f"s_cmp_eq_u64 s[{4+2*i}:{5+2*i}], s[72:73]\ns_cbranch_scc0 L_slow_{nm}")
        a.label(f"L_back_{nm}")
        slow.label(f"L_slow_{nm}")
        slow(f"""s_sub_u32 s85, s85, 1
        s_cmp_eq_u32 s85, 0
        s_cbranch_scc1 L_back_{nm}
        {ld}
        s_branch L_chk_{nm}""")
        return a
    ld_s = "s_load_dwordx8 s[4:11], s[86:87], 0 glc"; ld_m = "s_load_dwordx16 s[4:19], s[88:89], 0 glc"
    stamp(s, "bas")
    s("s_mov_b32 s85, 0x8000"); s(ld_m)
    s.extend(RC[4])
    s.extend(poll("m", ld_m, 5))
    stamp(s, "Hfl")
    def a2(i):
        d = ring[i % NR]
        so = "s81"
        if i < 11:
            va = vam; first = {0: rotf(i) + "\ns_cmp_eq_u32 s81, s84\ns_cselect_b32 s81, 0x40000, s81\ns_lshl_b32 s81, s81, 12"}
        else:
            va = vas; first = {0: f"s_lshl_b32 s81, s94, 14\ns_xor_b32 s81, s81, {4096*(i-11)}\ns_and_b32 s81, s81, 0x7000"}
        return group(first, [f"buffer_load_dwordx4 {vr(d+4*b,4)}, v{va}, s[64:67], {so} offen offset:{1024*b} {P['amod']}" for b in range(4)])
    A2 = [a2(i) for i in range(19)]
    def p2_mfma(i):
        o = S(); d = ring[i % NR]
        wb = 16 * (i & 7) if i < 11 else 128 + 16 * (i - 11)
        for b in range(4):
            for n in range(4):
                c_ = acc2 + 16 * b + 4 * n
                o(f"v_mfma_f32_16x16x32_bf16 {vr(c_,4)}, {ar(wb+4*n,4)}, {vr(d+4*b,4)}, {'0' if i == 0 else vr(c_,4)}")
        return o
    s.extend(flat(A2[0] + list(RC[5]) + A2[1] + list(RC[6]) + A2[2] + list(RC[7]) + A2[3]))
    late = {2: R2[8], 3: R2[9], 4: R2[10]}
    for i in range(19):
        f2 = []
        if i in late: f2 = list(late[i])
        if i == 5:
            a = S(); a.wait(ds=0); a("s_mov_b32 s85, 0x8000"); a(ld_s); f2 = [a]
        if i == 7:
            s.extend(poll("s", ld_s, 4)); stamp(s, "hfl")
        if i == 8: s.barrier()
        stamp(s, f"q{i}")
        if i == 0: s.wait(vm=last(A2[i]), ds=0)
        else: s.wait(vm=last(A2[i]))
        s.extend(weave(p2_mfma(i), (A2[i + 4] if i + 4 < 19 else [], 0, 0.9), (f2, 0.1, 1)))
    stamp(s, "q19")
    for b in range(4):
        for n in range(4):
            s(f"ds_write_b128 v{vrw+n}, {vr(acc2+16*b+4*n,4)} offset:{16384*b}")
    s.wait(ds=0)
    s.barrier()
    stamp(s, "red")
    kk = {}
    for i in range(4):
        for w_ in range(4):
            kk[i, w_] = s(f"ds_read_b128 {vr(ring[i]+4*w_,4)}, v{vrr+i} offset:{4096*w_}")
    for i in range(4):
        r_ = ring[i]; b_ = base + 4 * i
        s(f"s_mov_b32 s81, {ROFF[i]*2048}")
        s.wait(ds=kk[i, 3])
        for k in (0, 2):
            s(f"""v_pk_add_f32 {vr(r_+k,2)}, {vr(r_+k,2)}, {vr(r_+4+k,2)}
            v_pk_add_f32 {vr(r_+8+k,2)}, {vr(r_+8+k,2)}, {vr(r_+12+k,2)}
            v_pk_add_f32 {vr(b_+k,2)}, {vr(b_+k,2)}, {vr(r_+k,2)}
            v_pk_add_f32 {vr(b_+k,2)}, {vr(b_+k,2)}, {vr(r_+8+k,2)}""")
        s(f"buffer_store_dwordx4 {vr(b_,4)}, v{vxo}, s[68:71], s81 offen {P['outmod']}")
    s(f"""s_cmp_lg_u32 s2, 255
    s_cbranch_scc1 L_fin
    s_cmp_lg_u32 s3, 0
    s_cbranch_scc1 L_fin
    s_mov_b64 exec, 1
    v_mov_b32 v{t0}, 0
    buffer_store_dword v{vtag}, v{t0}, s[64:67], 0 offen sc1""")
    s.label("L_fin")
    if stamps and P.get("spin"):
        stamp(s, "ost")
        s.wait(vm=0)
        stamp(s, "end")
        s.wait(ds=0)
        s("s_sub_u32 s96, s96, s100\ns_add_u32 s100, s100, s96")
    elif stamps:
        stamp(s, "ost")
        s.wait(vm=0)
        stamp(s, "end")
        s.wait(ds=0)
        s(f"""s_lshl_b32 s81, s2, 2
        s_add_u32 s81, s81, s3
        s_lshl_b32 s81, s81, 6
        s_add_u32 s81, s81, {WS_TS}
        v_mov_b32 v{t0}, s81
        s_mov_b64 exec, 1""")
        for i, r_ in enumerate([100] + STREG[:nst[0]]):
            s(f"v_mov_b32 v{t1}, s{r_}\nglobal_store_dword v{t0}, v{t1}, s[36:37] offset:{4*i}")
    if P.get("spin"):
        s("s_cmp_lg_u32 s2, 0\ns_cbranch_scc1 L_end")
        s.label("L_spin")
        s(f"s_memrealtime s[4:5]\ns_waitcnt lgkmcnt(0)\ns_sub_u32 s4, s4, s100\ns_cmp_lt_u32 s4, {P['spin']}\ns_cbranch_scc1 L_spin")
    s.label("L_end")
    s("s_endpgm")
    s.extend(slow)
    rep = []
    lines, added = finalize(flat(s), rep)
    K = NAME + "_kernel"
    hdr = open("cdna_kernels/" + NAME + ".s.ref").read().split("; Override launch")[0]
    txt = hdr + ("; stamps: " + " ".join(["start"] + names) + "\n" if stamps else "") + "; @launch grid=(256,1,1) block=(256,1,1) lds=163840\n" + '.amdgcn_target "amdgcn-amd-amdhsa--gfx950"\n'
    txt += kernel_open(K) + "\n".join(("" if l.endswith(":") else "    ") + l for l in lines) + "\nL_code_end:\n"
    if P["touch"]: txt += f".set CODE_LIM, L_code_end - L_pc - 128\n"
    txt += kernel_desc(K)
    return txt, dict(nops=added, rep=rep, vpeak=V.peak, n=len(lines))

DEF = "xb0 b1 p1s pub p1m Hst hst Hfl q19 end".split()
if __name__ == "__main__":
    for a in sys.argv[1:]:
        parts = a.split(":", 2)
        P = {}
        if len(parts) > 1 and parts[1]:
            for kv in parts[1].split(","):
                k, val = kv.split("=")
                try: val = eval(val)
                except Exception: val = val.replace('_', ' ')
                P[k] = val
        st = None
        if "ts" in parts[0]: st = parts[2].split() if len(parts) > 2 else DEF
        txt, info = gen(stamps=st, P=P)
        open(parts[0] + ".s", "w").write(txt)
        print(parts[0], info["nops"], info["vpeak"], info["n"])
```
